```python
import torch

def _softmax(x, axis=-1):
    return torch.softmax(x, dim=axis)
def _gelu(x):
    return torch.nn.functional.gelu(x, approximate="tanh")
def _silu(x):
    return torch.nn.functional.silu(x)
def _sigmoid(x):
    return torch.sigmoid(x)
def _layernorm(x, axis=-1, eps=1e-5):
    m = x.mean(dim=axis, keepdim=True)
    v = x.var(dim=axis, keepdim=True, unbiased=False)
    return (x - m) / torch.sqrt(v + eps)
def _scatter_add(tgt, idx, src, axis=0):
    return tgt.clone().index_add_(axis, idx, src)
def _segment_sum(src, seg, n):
    out = torch.zeros((n,) + src.shape[1:], dtype=src.dtype)
    return out.index_add_(0, seg, src)
def _pad(x, pw):
    flat = tuple(v for pair in reversed(pw) for v in pair)
    return torch.nn.functional.pad(x, flat)

kernel_name = 'concat_heads__ssm_conv_h3__softmax_full_mha__prompt'

def setup_inputs():

    _w = (lambda a: (lambda t: t.to(torch.bfloat16) if t.is_floating_point() else t)(torch.as_tensor(a)))
    def _A_setup():
        B, S, D = 1, 2048, 448
        ks = 4
        return {
            "q": _w((lambda *s: torch.randn(*s, dtype=torch.bfloat16) * 0.05)(B, S, D)),
            "k": _w((lambda *s: torch.randn(*s, dtype=torch.bfloat16) * 0.4)(B, S, D)),
            "v": _w((lambda *s: torch.randn(*s, dtype=torch.bfloat16) * 0.4)(B, S, D)),
            "shift_k": _w((lambda *s: torch.randn(*s, dtype=torch.bfloat16) * 0.4)(D, ks) * 0.5),
            "ssm_k": _w((lambda *s: torch.randn(*s, dtype=torch.bfloat16) * 0.8)(D, S) * (1.0 / S ** 0.5)),
            "ssm_D": _w((lambda *s: torch.randn(*s, dtype=torch.bfloat16) * 0.4)(D)),
        }
    _A_in = _A_setup()

    def _B_setup():
        B, S, D = 1, 2048, 448
        return {
            "x": _w((lambda *s: torch.randn(*s, dtype=torch.bfloat16) * 0.2)(B, S, D)),
            "wqkv": _w((lambda *s: torch.randn(*s, dtype=torch.bfloat16) * 0.2)(D, 3 * D)),
            "wo": _w((lambda *s: torch.randn(*s, dtype=torch.bfloat16) * 0.05)(D, D)),
        }
    _B_in = _B_setup()

    return {
        "A_q": _A_in["q"],
        "A_k": _A_in["k"],
        "A_v": _A_in["v"],
        "A_shift_k": _A_in["shift_k"],
        "A_ssm_k": _A_in["ssm_k"],
        "A_ssm_D": _A_in["ssm_D"],
        "B_x": _B_in["x"],
        "B_wqkv": _B_in["wqkv"],
        "B_wo": _B_in["wo"],
    }

def reference(A_q, A_k, A_v, A_shift_k, A_ssm_k, A_ssm_D, B_x, B_wqkv, B_wo):
    def _A_ref(q, k, v, shift_k, ssm_k, ssm_D):
        B, S, D = q.shape
        ks = shift_k.shape[-1]
        k_pad = _pad(k, ((0, 0), (ks - 1, 0), (0, 0)))
        k_shift = torch.zeros_like(k)
        for t in range(ks):
            k_shift = k_shift + k_pad[:, t:t + S, :] * shift_k[:, ks - 1 - t][None, None, :]
        kv = k_shift * v
        L = 2 * S
        kv_pad = _pad(kv, ((0, 0), (0, S), (0, 0)))
        kf_pad = _pad(ssm_k, ((0, 0), (0, S)))
        kv_f = (lambda x, axes=(-2,-1): torch.fft.rfft2(x.float(), dim=axes))(kv_pad[:, None, :, :], axes=(1, 2))
        kf_f = (lambda x, axes=(-2,-1): torch.fft.rfft2(x.float(), dim=axes))(kf_pad[:, None, :], axes=(1, 2))
        kf_f = (lambda x, *d: x.permute(*d))(kf_f, 1, 2, 0)
        y_f = kv_f * kf_f[None, :, :, :]
        y = (lambda x, s, axes=(-2,-1): torch.fft.irfft2(x, s=s, dim=axes).to(torch.bfloat16))(y_f, (1, L), axes=(1, 2))[:, 0, :S, :]
        y = y + kv * ssm_D[None, None, :]
        return q * y

    def _B_ref(x, wqkv, wo):
        B, S, D = x.shape
        H = 16; Dh = D // H
        qkv = (lambda x, *d: x.permute(*d))((x @ wqkv).reshape(B, S, 3, H, Dh), 2, 0, 3, 1, 4)
        q, k, v = qkv[0], qkv[1], qkv[2]
        scale = Dh ** -0.5
        scores = torch.einsum("bhqd,bhkd->bhqk", q, k) * scale
        p = _softmax(scores, axis=-1)
        o = torch.einsum("bhqk,bhkd->bhqd", p, v)
        return (lambda x, *d: x.permute(*d))(o, 0, 2, 1, 3).reshape(B, S, D) @ wo

    a = _A_ref(A_q, A_k, A_v, A_shift_k, A_ssm_k, A_ssm_D)
    b = _B_ref(B_x, B_wqkv, B_wo)
    return torch.concatenate([a, b], axis=-1)
```

```python
class Asm:
    def __init__(self):
        self.L = []
    def __call__(self, s=""):
        for line in s.split("\n"):
            line = line.strip()
            if line: self.L.append("  " + line)
    def label(self, l): self.L.append(l + ":")
    def comment(self, c): self.L.append("  ; " + c)
    def raw(self, s): self.L.append(s)
    def text(self): return "\n".join(self.L) + "\n"
def vr(a, n=1): return f"v{a}" if n == 1 else f"v[{a}:{a+n-1}]"
def sr(a, n=1): return f"s{a}" if n == 1 else f"s[{a}:{a+n-1}]"
def kernel_head(name):
    return f".globl {name}\n.p2align 8\n.type {name},@function\n{name}:\n"
def kernel_desc(name, vgpr, sgpr=102, accum=None):
    accum = accum if accum is not None else ((vgpr + 3) // 4) * 4
    return f""".p2align 6
.amdhsa_kernel {name}
  .amdhsa_next_free_vgpr {vgpr}
  .amdhsa_next_free_sgpr {sgpr}
  .amdhsa_accum_offset {accum}
  .amdhsa_group_segment_fixed_size 0
  .amdhsa_kernarg_size 96
  .amdhsa_user_sgpr_count 2
  .amdhsa_user_sgpr_kernarg_segment_ptr 1
  .amdhsa_system_sgpr_workgroup_id_x 1
.end_amdhsa_kernel
"""
```

```python
from asmlib import *
S = 2048; D = 448; H = 16; DH = 28
WS_Q  = 0x000000
WS_KV = 0x200000
WS_U  = 0x600000
WS_Z  = 0x800000
WS_O  = 0xA00000
WS_SIZE = 0xC00000
S_WS, S_X, S_WQKV, S_AK, S_AV, S_SH, S_AQ, S_SK, S_SD, S_WO, S_OUT, S_DBG = [4 + 4*i for i in range(12)]
SRD_INFO = [
    (S_AQ, 0, 1835008), (S_AK, 8, 1835008), (S_AV, 16, 1835008), (S_SH, 24, 3584),
    (S_SK, 32, 1835008), (S_SD, 40, 896), (S_X, 48, 1835008), (S_WQKV, 56, 1204224),
    (S_WO, 64, 401408), (S_OUT, 72, 3670016), (S_DBG, 80, 256), (S_WS, 88, WS_SIZE)]
S_WAVE = 3
V_LANE = 1
def prologue(a, nwg, exit_label):
    a(f"s_cmp_ge_u32 s2, {nwg}")
    a(f"s_cbranch_scc1 {exit_label}")
    a("s_load_dwordx16 s[64:79], s[0:1], 0")
    a("s_load_dwordx8 s[80:87], s[0:1], 64")
    a("v_lshrrev_b32 v2, 6, v0")
    a(f"v_and_b32 v{V_LANE}, 63, v0")
    a(f"v_readfirstlane_b32 s{S_WAVE}, v2")
    for (b, off, nb) in SRD_INFO:
        a(f"s_mov_b32 s{b+2}, {nb}")
        a(f"s_mov_b32 s{b+3}, 0x00020000")
    a("s_waitcnt lgkmcnt(0)")
    for (b, off, nb) in SRD_INFO:
        a(f"s_mov_b32 s{b}, s{64 + off//4}")
        a(f"s_mov_b32 s{b+1}, s{64 + off//4 + 1}")
```

```python
from common import *
QSCALE = float(28 ** -0.5 * 1.4426950408889634)
import struct
def f32hex(x): return "0x%08x" % struct.unpack("<I", struct.pack("<f", x))[0]
SLOT = 28672
XB = 16384
L1_BOUNCE = 5 * SLOT
L1_SIZE = L1_BOUNCE + 8192

def phase1(a, uid="p1", sc1=""):
    st = (" " + sc1) if sc1 else ""
    a("s_and_b32 s52, s2, 7")
    a("s_lshr_b32 s53, s2, 3")
    a("s_lshr_b32 s54, s52, 1")
    a("s_lshl_b32 s54, s54, 2")
    a("s_and_b32 s55, s53, 3")
    a("s_add_u32 s54, s54, s55")
    a("s_and_b32 s55, s52, 1")
    a("s_lshl_b32 s55, s55, 3")
    a("s_lshr_b32 s56, s53, 2")
    a("s_add_u32 s55, s55, s56")
    a("s_mul_i32 s56, s2, 9363")
    a("s_lshr_b32 s56, s56, 16")
    a("s_mul_i32 s57, s56, 7")
    a("s_sub_u32 s57, s2, s57")
    a(f"s_cmp_ge_u32 s2, 224")
    a(f"s_cbranch_scc1 L_{uid}_nopre_ld")
    a(f"v_lshrrev_b32 v2, 3, v{V_LANE}")
    a(f"s_lshl_b32 s58, s{S_WAVE}, 3")
    a("v_add_u32 v2, s58, v2")
    a(f"v_and_b32 v3, 7, v{V_LANE}")
    a("s_lshl_b32 s58, s56, 6")
    a("v_add_u32 v4, s58, v2")
    a("s_movk_i32 s59, 896")
    a("v_mul_lo_u32 v5, v4, s59")
    a("v_lshlrev_b32 v6, 4, v3")
    a("s_lshl_b32 s58, s57, 7")
    a("v_add3_u32 v5, v5, v6, s58")
    for j in (1, 2, 3):
        a(f"v_subrev_u32 v{6+j}, {896*j}, v5")
        a(f"v_cmp_gt_u32 vcc, {j}, v4")
        a("s_nop 1")
        a(f"v_mov_b32 v10, 0x80000000")
        a(f"v_cndmask_b32 v{6+j}, v{6+j}, v10, vcc")
    a(f"buffer_load_dwordx4 v[12:15], v5, s[{S_AK}:{S_AK+3}], 0 offen")
    a(f"buffer_load_dwordx4 v[16:19], v7, s[{S_AK}:{S_AK+3}], 0 offen")
    a(f"buffer_load_dwordx4 v[20:23], v8, s[{S_AK}:{S_AK+3}], 0 offen")
    a(f"buffer_load_dwordx4 v[24:27], v9, s[{S_AK}:{S_AK+3}], 0 offen")
    a(f"buffer_load_dwordx4 v[28:31], v5, s[{S_AV}:{S_AV+3}], 0 offen")
    a("v_lshlrev_b32 v6, 6, v3")
    a("s_lshl_b32 s58, s57, 9")
    a("v_add_u32 v6, s58, v6")
    for i in range(4):
        a(f"buffer_load_dwordx4 v[{32+4*i}:{35+4*i}], v6, s[{S_SH}:{S_SH+3}], 0 offen offset:{16*i}")
    a.label(f"L_{uid}_nopre_ld")
    a(f"s_and_b32 s58, s{S_WAVE}, 3")
    a(f"v_lshrrev_b32 v50, 3, v{V_LANE}")
    a("s_movk_i32 s59, 896")
    a("v_mul_lo_u32 v50, v50, s59")
    a(f"v_and_b32 v51, 7, v{V_LANE}")
    a(f"v_lshrrev_b32 v52, 4, v{V_LANE}")
    a("v_xor_b32 v51, v51, v52")
    a("v_xor_b32 v52, 4, v51")
    a("v_lshl_add_u32 v51, v51, 4, v50")
    a("v_lshl_add_u32 v52, v52, 4, v50")
    for m in range(3):
        a(f"v_add_u32 v53, {64*m}, v{V_LANE}")
        a("s_movk_i32 s59, 5462")
        a("v_mul_lo_u32 v54, v53, s59")
        a("v_lshrrev_b32 v54, 16, v54")
        a("v_mul_u32_u24 v55, 12, v54")
        a("v_sub_u32 v55, v53, v55")
        a("s_movk_i32 s59, 2688")
        a("v_mul_lo_u32 v54, v54, s59")
        a(f"v_lshl_add_u32 v{56+m}, v55, 4, v54")
    a("s_lshl_b32 s60, s54, 7")
    a("s_lshl_b32 s61, s58, 5")
    a("s_add_u32 s60, s60, s61")
    a("s_mul_i32 s60, s60, 896")
    a("s_mul_i32 s61, s58, 43008")
    a("s_mul_i32 s62, s55, 168")
    a("s_add_u32 s61, s61, s62")
    a("s_lshl_b32 s62, s58, 12")
    a("s_mul_i32 s63, s58, 3072")
    a(f"s_cmp_lt_u32 s{S_WAVE}, 4")
    a(f"s_cbranch_scc1 L_{uid}_nodma")
    def dma_chunk(c):
        slot = (c % 5) * SLOT
        for n in range(4):
            a(f"s_add_u32 m0, s62, {slot + n*1024}")
            a(f"s_add_u32 s88, s60, {n*8*896 + c*128}")
            a(f"buffer_load_dwordx4 v{51 + (n & 1)}, s[{S_X}:{S_X+3}], s88 offen lds")
        for m in range(3):
            a(f"s_add_u32 m0, s63, {slot + XB + m*1024}")
            a(f"s_add_u32 s88, s61, {c*64*2688}")
            a(f"buffer_load_dwordx4 v{56+m}, s[{S_WQKV}:{S_WQKV+3}], s88 offen lds")
    for c in range(5): dma_chunk(c)
    a.label(f"L_{uid}_nodma")
    a(f"s_cmp_ge_u32 s2, 224")
    a(f"s_cbranch_scc1 L_{uid}_nopre")
    a(f"s_cmp_lt_u32 s{S_WAVE}, 4")
    a(f"s_cbranch_scc1 L_{uid}_w0")
    a("s_waitcnt vmcnt(35)")
    a(f"s_branch L_{uid}_w1")
    a.label(f"L_{uid}_w0")
    a("s_waitcnt vmcnt(0)")
    a.label(f"L_{uid}_w1")
    a("s_mov_b32 s88, 0x05040100")
    a("s_mov_b32 s89, 0x07060302")
    for e in range(8):
        sel = "s88" if e % 2 == 0 else "s89"
        r = e // 2
        a(f"v_perm_b32 v{60+e}, v{16+r}, v{12+r}, {sel}")
        a(f"v_perm_b32 v{68+e}, v{24+r}, v{20+r}, {sel}")
    for e in range(8):
        a(f"v_dot2_f32_bf16 v{76+e}, v{60+e}, v{32+2*e}, 0")
    for e in range(8):
        a(f"v_dot2_f32_bf16 v{76+e}, v{68+e}, v{33+2*e}, v{76+e}")
    for e in range(8):
        r = e // 2
        if e % 2 == 0: a(f"v_lshlrev_b32 v{60+e}, 16, v{28+r}")
        else: a(f"v_and_b32 v{60+e}, 0xffff0000, v{28+r}")
    for e in range(8):
        a(f"v_mul_f32 v{76+e}, v{76+e}, v{60+e}")
    for r in range(4):
        a(f"v_cvt_pk_bf16_f32 v{84+r}, v{76+2*r}, v{77+2*r}")
    a("v_lshrrev_b32 v10, 1, v2")
    a("v_and_b32 v10, 1, v10")
    a("v_lshlrev_b32 v10, 2, v10")
    a("v_xor_b32 v10, v10, v3")
    a("v_lshlrev_b32 v10, 4, v10")
    a("v_lshl_add_u32 v10, v2, 7, v10")
    a(f"v_add_u32 v10, {L1_BOUNCE}, v10")
    a("ds_write_b128 v10, v[84:87]")
    a(f"v_bfe_u32 v11, v{V_LANE}, 2, 2")
    a("v_sub_u32 v12, 3, v11")
    a(f"v_lshrrev_b32 v13, 4, v{V_LANE}")
    a("v_lshlrev_b32 v13, 1, v13")
    a(f"v_bfe_u32 v14, v{V_LANE}, 1, 1")
    a("v_add_u32 v13, v13, v14")
    a("v_lshrrev_b32 v14, 1, v12")
    a("v_lshlrev_b32 v14, 2, v14")
    a("v_xor_b32 v13, v13, v14")
    a("v_lshlrev_b32 v13, 4, v13")
    a(f"v_and_b32 v14, 1, v{V_LANE}")
    a("v_lshl_add_u32 v13, v14, 3, v13")
    a("v_lshl_add_u32 v13, v12, 7, v13")
    a(f"s_lshl_b32 s58, s{S_WAVE}, 10")
    a(f"s_add_u32 s58, s58, {L1_BOUNCE}")
    a("v_add_u32 v13, s58, v13")
    a("s_waitcnt lgkmcnt(0)")
    a("ds_read_b64_tr_b16 v[88:89], v13 offset:512")
    a("ds_read_b64_tr_b16 v[90:91], v13")
    a("s_lshl_b32 s58, s57, 6")
    a(f"v_add_u32 v14, s58, v{V_LANE}")
    a("v_lshlrev_b32 v14, 12, v14")
    a("s_lshl_b32 s58, s56, 6")
    a(f"s_lshl_b32 s59, s{S_WAVE}, 3")
    a("s_add_u32 s58, s58, s59")
    a("s_sub_u32 s58, 2040, s58")
    a("s_lshl_b32 s58, s58, 1")
    a(f"s_add_u32 s58, s58, {WS_U}")
    a("s_waitcnt lgkmcnt(0)")
    a(f"buffer_store_dwordx4 v[88:91], v14, s[{S_WS}:{S_WS+3}], s58 offen{st}")
    a.label(f"L_{uid}_nopre")
    return dict()

def phase1_gemm(a, uid="p1", sc1=""):
    st = (" " + sc1) if sc1 else ""
    a(f"s_cmp_lt_u32 s{S_WAVE}, 4")
    a(f"s_cbranch_scc1 L_{uid}_gemm")
    def dma_chunk(c):
        slot = (c % 5) * SLOT
        for n in range(4):
            a(f"s_add_u32 m0, s62, {slot + n*1024}")
            a(f"s_add_u32 s88, s60, {n*8*896 + c*128}")
            a(f"buffer_load_dwordx4 v{51 + (n & 1)}, s[{S_X}:{S_X+3}], s88 offen lds")
        for m in range(3):
            a(f"s_add_u32 m0, s63, {slot + XB + m*1024}")
            a(f"s_add_u32 s88, s61, {c*64*2688}")
            a(f"buffer_load_dwordx4 v{56+m}, s[{S_WQKV}:{S_WQKV+3}], s88 offen lds")
    waits = [28, 21, 21, 21, 14, 7, 0]
    for c in range(7):
        a(f"s_waitcnt vmcnt({waits[c]})")
        a("s_barrier")
        if c == 1: dma_chunk(5)
        if c == 2: dma_chunk(6)
    a(f"s_branch L_{uid}_done")
    a.label(f"L_{uid}_gemm")
    ACC = 64
    XF = [8, 12]
    WF = [16, 28]
    VX = 40
    VW = 44
    a(f"v_and_b32 v2, 31, v{V_LANE}")
    a(f"v_lshrrev_b32 v3, 5, v{V_LANE}")
    a("v_bfe_u32 v4, v2, 1, 3")
    a(f"s_lshl_b32 s58, s{S_WAVE}, 12")
    a("v_lshlrev_b32 v5, 7, v2")
    a("v_add_u32 v5, s58, v5")
    for ks in range(4):
        a(f"v_add_u32 v6, {2*ks}, v3")
        a("v_xor_b32 v6, v6, v4")
        a(f"v_lshl_add_u32 v{VX+ks}, v6, 4, v5")
    a(f"v_bfe_u32 v6, v{V_LANE}, 2, 2")
    a("v_lshl_add_u32 v6, v3, 3, v6")
    a("v_mul_u32_u24 v6, 192, v6")
    a(f"v_bfe_u32 v7, v{V_LANE}, 4, 1")
    a("v_lshl_add_u32 v6, v7, 5, v6")
    a(f"v_and_b32 v7, 3, v{V_LANE}")
    a("v_lshl_add_u32 v6, v7, 3, v6")
    a(f"v_add_u32 v{VW}, {XB}, v6")
    for i in range(48):
        a(f"v_mov_b32 v{ACC+i}, 0")
    def reads(ks, buf):
        a(f"ds_read_b128 v[{XF[buf]}:{XF[buf]+3}], v{VX+ks}")
        for ft in range(3):
            for jj in range(2):
                r0 = WF[buf] + 4*ft + 2*jj
                a(f"ds_read_b64_tr_b16 v[{r0}:{r0+1}], v{VW} offset:{ks*3072 + jj*768 + 56*ft}")
    for c in range(7):
        if c > 0:
            d = ((c % 5) - ((c-1) % 5)) * SLOT
            for k in range(4): a(f"v_add_u32 v{VX+k}, {d & 0xffffffff:#x}, v{VX+k}")
            a(f"v_add_u32 v{VW}, {d & 0xffffffff:#x}, v{VW}")
        a("s_barrier")
        reads(0, 0)
        for ks in range(4):
            buf = ks & 1
            if ks < 3:
                reads(ks+1, buf ^ 1)
                a("s_waitcnt lgkmcnt(7)")
            else:
                a("s_waitcnt lgkmcnt(0)")
            for ft in range(3):
                w0 = WF[buf] + 4*ft
                a(f"v_mfma_f32_32x32x16_bf16 v[{ACC+16*ft}:{ACC+16*ft+15}], v[{w0}:{w0+3}], v[{XF[buf]}:{XF[buf]+3}], v[{ACC+16*ft}:{ACC+16*ft+15}]")
    a("s_nop 15")
    a("s_lshl_b32 s58, s54, 2")
    a(f"s_add_u32 s58, s58, s{S_WAVE}")
    a(f"v_cmp_lt_u32 s[90:91], 31, v{V_LANE}")
    a(f"v_lshlrev_b32 v2, 4, v{V_LANE}")
    a(f"s_lshl_b32 s59, s{S_WAVE}, 11")
    a(f"s_add_u32 s59, s59, {L1_BOUNCE}")
    a(f"v_and_b32 v3, 31, v{V_LANE}")
    a("v_lshlrev_b32 v3, 6, v3")
    a(f"v_lshrrev_b32 v4, 5, v{V_LANE}")
    a("v_lshl_add_u32 v3, v4, 3, v3")
    a("v_add_u32 v3, s59, v3")
    a(f"v_bfe_u32 v5, v{V_LANE}, 2, 2")
    a("v_lshl_add_u32 v5, v4, 2, v5")
    a("v_lshlrev_b32 v5, 6, v5")
    a(f"v_bfe_u32 v6, v{V_LANE}, 4, 1")
    a("v_lshl_add_u32 v5, v6, 5, v5")
    a(f"v_and_b32 v6, 3, v{V_LANE}")
    a("v_lshl_add_u32 v5, v6, 3, v5")
    a("v_add_u32 v5, s59, v5")
    for ft in range(3):
        A0 = ACC + 16*ft
        P = 8
        a("s_mul_i32 s60, s55, 3")
        a(f"s_add_u32 s60, s60, {ft}")
        a("s_lshr_b32 s61, s60, 4")
        a("s_and_b32 s62, s60, 15")
        a("s_cmp_eq_u32 s61, 0")
        a(f"s_cselect_b32 s63, {f32hex(QSCALE)}, 1.0")
        for i in range(16):
            a(f"v_mul_f32 v{A0+i}, s63, v{A0+i}")
        for i in range(8):
            a(f"v_cvt_pk_bf16_f32 v{P+i}, v{A0+2*i}, v{A0+2*i+1}")
        a("s_cmp_eq_u32 s61, 2")
        a("s_cselect_b32 s63, 0x3f80, 0")
        a("v_mov_b32 v16, s63")
        a("v_mov_b32 v17, 0")
        a(f"v_cndmask_b32 v{P+6}, v{P+6}, v16, s[90:91]")
        a(f"v_cndmask_b32 v{P+7}, v{P+7}, v17, s[90:91]")
        a(f"s_cbranch_scc1 L_{uid}_vt{ft}")
        a("s_cmp_eq_u32 s61, 0")
        a("s_cselect_b32 s88, 11, 12")
        a(f"s_cselect_b32 s89, {WS_Q}, {WS_KV}")
        a("s_lshl_b32 s92, s62, 6")
        a("s_add_u32 s92, s92, s58")
        a("s_lshl_b32 s92, s92, s88")
        a("s_add_u32 s92, s92, s89")
        a(f"buffer_store_dwordx4 v[{P}:{P+3}], v2, s[{S_WS}:{S_WS+3}], s92 offen{st}")
        a(f"buffer_store_dwordx4 v[{P+4}:{P+7}], v2, s[{S_WS}:{S_WS+3}], s92 offen offset:1024{st}")
        a(f"s_branch L_{uid}_vd{ft}")
        a.label(f"L_{uid}_vt{ft}")
        for blk in range(4):
            a(f"ds_write_b64 v3, v[{P+2*blk}:{P+2*blk+1}] offset:{16*blk}")
        a("s_waitcnt lgkmcnt(0)")
        for t in range(2):
            for jj in range(2):
                a(f"ds_read_b64_tr_b16 v[{20+4*t+2*jj}:{21+4*t+2*jj}], v5 offset:{(16*t+8*jj)*64}")
        a("s_lshl_b32 s92, s62, 6")
        a("s_add_u32 s92, s92, s58")
        a("s_lshl_b32 s92, s92, 12")
        a(f"s_add_u32 s92, s92, {WS_KV + 2048}")
        a("s_waitcnt lgkmcnt(0)")
        a(f"buffer_store_dwordx4 v[20:23], v2, s[{S_WS}:{S_WS+3}], s92 offen{st}")
        a(f"buffer_store_dwordx4 v[24:27], v2, s[{S_WS}:{S_WS+3}], s92 offen offset:1024{st}")
        a.label(f"L_{uid}_vd{ft}")
        a("s_nop 1")
    a.label(f"L_{uid}_done")
```

```python
from common import *
HC_PITCH = 4160
HC_CH = 4 * HC_PITCH
LC_U = 2 * HC_CH
U_PITCH = 4608
LC_RED = LC_U + 2 * U_PITCH
LC_SIZE = LC_RED + 16384

def conv_build_h(a, uid="cv"):
    a(f"s_lshr_b32 s52, s{S_WAVE}, 2")
    a(f"s_and_b32 s53, s{S_WAVE}, 3")
    a("s_lshl_b32 s54, s2, 1")
    a("s_add_u32 s54, s54, s52")
    a("s_lshl_b32 s55, s54, 12")
    a(f"s_add_u32 s56, s{S_SK}, s55")
    a(f"s_addc_u32 s57, s{S_SK+1}, 0")
    a("s_movk_i32 s58, 4096")
    a("s_mov_b32 s59, 0x00020000")
    a("s_lshl_b32 s60, s53, 6")
    a(f"v_add_u32 v2, s60, v{V_LANE}")
    a("v_lshlrev_b32 v3, 4, v2")
    a("v_subrev_u32 v4, 16, v3")
    a("v_cmp_eq_u32 vcc, 0, v2")
    a("v_mov_b32 v5, 0x80000000")
    a("s_nop 0")
    a("v_cndmask_b32 v4, v4, v5, vcc")
    a("buffer_load_dwordx4 v[8:11], v4, s[56:59], 0 offen")
    a("buffer_load_dwordx4 v[12:15], v3, s[56:59], 0 offen")
    a(f"v_cmp_eq_u32 vcc, 0, v{V_LANE}")
    a("v_mov_b32 v6, 4080")
    a("s_nop 0")
    a("v_cndmask_b32 v6, v5, v6, vcc")
    a("buffer_load_dwordx4 v[32:35], v6, s[56:59], 0 offen")
    a("v_mov_b32 v7, 4112")
    a("v_cndmask_b32 v7, 0, v7, vcc")
    a(f"s_mul_i32 s61, s52, {HC_CH}")
    a("v_add_u32 v7, s61, v7")
    a("v_add_u32 v3, 16, v3")
    a("v_add_u32 v3, s61, v3")
    def emit(D, dst):
        for j in range(4): a(f"v_alignbit_b32 v{20+j}, v{D+j+1}, v{D+j}, 16")
        for j in range(4): a(f"v_alignbit_b32 v{24+j}, v{D+j+2}, v{D+j+1}, 16")
        for j in range(4): a(f"v_mov_b32 v{28+j}, v{D+j+1}")
        a(f"ds_write_b128 v{dst}, v[20:23]")
        a(f"ds_write_b128 v{dst}, v[28:31] offset:{HC_PITCH}")
        a(f"ds_write_b128 v{dst}, v[24:27] offset:{2*HC_PITCH}")
        a(f"ds_write_b128 v{dst}, v[{D+2}:{D+5}] offset:{3*HC_PITCH}")
    a("s_waitcnt vmcnt(1)")
    emit(8, 3)
    a("s_cmp_eq_u32 s53, 3")
    a(f"s_cbranch_scc0 L_{uid}_notail")
    a("s_waitcnt vmcnt(0)")
    for j in range(4): a(f"v_mov_b32 v{36+j}, 0")
    emit(32, 7)
    a.label(f"L_{uid}_notail")

def conv_load_u(a, uid="cv", sc1=""):
    st = (" " + sc1) if sc1 else ""
    a(f"s_mul_i32 s60, s52, {U_PITCH}")
    a("s_lshl_b32 s61, s53, 10")
    a("s_add_u32 s60, s60, s61")
    a(f"s_add_u32 m0, s60, {LC_U}")
    a("s_lshl_b32 s62, s54, 12")
    a("s_add_u32 s62, s62, s61")
    a(f"s_add_u32 s62, s62, {WS_U}")
    a(f"v_lshlrev_b32 v2, 4, v{V_LANE}")
    a(f"buffer_load_dwordx4 v2, s[{S_WS}:{S_WS+3}], s62 offen lds{st}")
    a("s_cmp_eq_u32 s53, 0")
    a(f"s_cbranch_scc0 L_{uid}_nopad")
    a(f"v_and_b32 v2, 31, v{V_LANE}")
    a("v_lshlrev_b32 v2, 4, v2")
    a(f"s_mul_i32 s60, s52, {U_PITCH}")
    a(f"s_add_u32 s60, s60, {LC_U + 4096}")
    a("v_add_u32 v2, s60, v2")
    for j in range(4): a(f"v_mov_b32 v{8+j}, 0")
    a("ds_write_b128 v2, v[8:11]")
    a.label(f"L_{uid}_nopad")

def conv_main(a, uid="cv", sc1=""):
    st = (" " + sc1) if sc1 else ""
    a("s_waitcnt vmcnt(0) lgkmcnt(0)")
    a("s_barrier")
    a(f"s_cmp_ge_u32 s{S_WAVE}, 4")
    a(f"s_cbranch_scc1 L_{uid}_idle")
    a(f"s_lshr_b32 s52, s{S_WAVE}, 1")
    a(f"s_and_b32 s53, s{S_WAVE}, 1")
    a("s_lshl_b32 s54, s2, 1")
    a("s_add_u32 s54, s54, s52")
    a("s_lshl_b32 s55, s2, 2")
    a(f"s_load_dword s60, s[{S_SD}:{S_SD+1}], s55")
    VA, VB = 2, 3
    a(f"v_lshrrev_b32 v4, 4, v{V_LANE}")
    a(f"v_bfe_u32 v5, v{V_LANE}, 2, 2")
    a(f"v_and_b32 v6, 3, v{V_LANE}")
    a(f"v_mul_u32_u24 v5, {HC_PITCH}, v5")
    a("v_lshl_add_u32 v5, v4, 4, v5")
    a("v_lshl_add_u32 v5, v6, 3, v5")
    a(f"s_mul_i32 s61, s52, {HC_CH}")
    a("s_lshl_b32 s62, s53, 8")
    a("s_add_u32 s61, s61, s62")
    a(f"v_add_u32 v{VA}, s61, v5")
    a(f"v_and_b32 v6, 15, v{V_LANE}")
    a("v_lshlrev_b32 v7, 5, v6")
    a("v_lshlrev_b32 v5, 4, v4")
    a("v_sub_u32 v5, v5, v7")
    a(f"s_mul_i32 s61, s52, {U_PITCH}")
    a(f"s_add_u32 s61, s61, {LC_U + 480}")
    a("s_add_u32 s61, s61, s62")
    a(f"v_add_u32 v{VB}, s61, v5")
    ACC = 32
    AB = [64, 128]
    for i in range(32): a(f"v_mov_b32 v{ACC+i}, 0")
    def rd_list(k, buf):
        L = []
        for t in range(8):
            for jj in range(2):
                r0 = AB[buf] + 4*t + 2*jj
                L.append(f"ds_read_b64_tr_b16 v[{r0}:{r0+1}], v{VA} offset:{64*(8*t + k) + 8*jj}")
            s_ = -t
            r0 = AB[buf] + 32 + 4*t
            L.append(f"ds_read_b128 v[{r0}:{r0+3}], v{VB} offset:{64*(8*s_ + k + 56)}")
        return L
    L = rd_list(0, 0)
    for i, ins in enumerate(L):
        a(ins)
        if i == 11: a("s_waitcnt lgkmcnt(3)")
    for k in range(4):
        buf = k & 1
        a("s_waitcnt lgkmcnt(0)")
        nxt = rd_list(k+1, buf ^ 1) if k < 3 else []
        mf = []
        for n in range(8):
            for t in range(n+1):
                A_ = AB[buf] + 4*t; B_ = AB[buf] + 32 + 4*(n - t)
                mf.append(f"v_mfma_f32_16x16x32_bf16 v[{ACC+4*n}:{ACC+4*n+3}], v[{A_}:{A_+3}], v[{B_}:{B_+3}], v[{ACC+4*n}:{ACC+4*n+3}]")
        mf = []
        for t in range(8):
            for n in range(t, 8):
                A_ = AB[buf] + 4*t; B_ = AB[buf] + 32 + 4*(n - t)
                mf.append(f"v_mfma_f32_16x16x32_bf16 v[{ACC+4*n}:{ACC+4*n+3}], v[{A_}:{A_+3}], v[{B_}:{B_+3}], v[{ACC+4*n}:{ACC+4*n+3}]")
        ni = 0
        for i, m in enumerate(mf):
            a(m)
            if i % 3 != 2 and ni < len(nxt):
                a(nxt[ni]); ni += 1
                if ni == 12: a("s_waitcnt lgkmcnt(8)") if False else None
        while ni < len(nxt):
            a(nxt[ni]); ni += 1
    a("s_nop 7")
    a(f"v_lshlrev_b32 v4, 4, v{V_LANE}")
    a(f"s_lshl_b32 s61, s{S_WAVE}, 12")
    a(f"s_add_u32 s61, s61, {LC_RED}")
    a("v_add_u32 v5, s61, v4")
    a("s_xor_b32 s61, s61, 0")
    a(f"s_xor_b32 s62, s{S_WAVE}, 1")
    a("s_lshl_b32 s62, s62, 12")
    a(f"s_add_u32 s62, s62, {LC_RED}")
    a("v_add_u32 v6, s62, v4")
    a("s_cmp_eq_u32 s53, 0")
    a(f"s_cbranch_scc0 L_{uid}_g1")
    for i in range(4): a(f"ds_write_b128 v5, v[{ACC+16+4*i}:{ACC+16+4*i+3}] offset:{1024*i}")
    a(f"s_branch L_{uid}_g2")
    a.label(f"L_{uid}_g1")
    for i in range(4): a(f"ds_write_b128 v5, v[{ACC+4*i}:{ACC+4*i+3}] offset:{1024*i}")
    a("s_waitcnt lgkmcnt(0)")
    for i in range(16): a(f"v_mov_b32 v{ACC+i}, v{ACC+16+i}")
    a.label(f"L_{uid}_g2")
    a("s_waitcnt lgkmcnt(0)")
    a.label(f"L_{uid}_idle")
    a("s_barrier")
    a(f"s_cmp_ge_u32 s{S_WAVE}, 4")
    a(f"s_cbranch_scc1 L_{uid}_end")
    for i in range(4): a(f"ds_read_b128 v[{64+4*i}:{64+4*i+3}], v6 offset:{1024*i}")
    a(f"v_and_b32 v7, 15, v{V_LANE}")
    a(f"v_lshrrev_b32 v8, 4, v{V_LANE}")
    a("v_lshlrev_b32 v9, 5, v7")
    a("v_lshl_add_u32 v9, v8, 3, v9")
    a(f"s_mul_i32 s61, s52, {U_PITCH}")
    a(f"s_add_u32 s61, s61, {LC_U + 4088 - 3*512}")
    a("s_lshl_b32 s62, s53, 11")
    a("s_sub_u32 s61, s61, s62")
    a("v_sub_u32 v10, s61, v9")
    for i in range(4): a(f"ds_read_b64 v[{80+2*i}:{81+2*i}], v10 offset:{(3-i)*512}")
    a("s_waitcnt lgkmcnt(0)")
    a("s_cmp_eq_u32 s52, 0")
    a("s_cselect_b32 s61, 16, 0")
    a("s_lshl_b32 s60, s60, s61")
    a("s_and_b32 s60, s60, 0xffff0000")
    a("s_lshl_b32 s61, s54, 12")
    a("s_lshl_b32 s62, s53, 11")
    a("s_add_u32 s61, s61, s62")
    a(f"s_add_u32 s61, s61, {WS_Z}")
    for i in range(4):
        Y = ACC + 4*i; Pp = 64 + 4*i; U0 = 80 + 2*i
        for r in range(4): a(f"v_add_f32 v{Y+r}, v{Y+r}, v{Pp+r}")
        a(f"v_and_b32 v12, 0xffff0000, v{U0+1}")
        a(f"v_lshlrev_b32 v13, 16, v{U0+1}")
        a(f"v_and_b32 v14, 0xffff0000, v{U0}")
        a(f"v_lshlrev_b32 v15, 16, v{U0}")
        for r in range(4): a(f"v_fma_f32 v{Y+r}, v{12+r}, s60, v{Y+r}")
        a(f"v_cvt_pk_bf16_f32 v{16+2*i}, v{Y}, v{Y+1}")
        a(f"v_cvt_pk_bf16_f32 v{17+2*i}, v{Y+2}, v{Y+3}")
        a(f"buffer_store_dwordx2 v[{16+2*i}:{17+2*i}], v9, s[{S_WS}:{S_WS+3}], s61 offen offset:{512*i}{st}")
    a.label(f"L_{uid}_end")

LA_RING = 0
LA_COMB = 98304
LA_FLAG = LA_COMB + 16384
LA_SIZE = LA_FLAG + 256

def attention(a, uid="at", sc1_ld="", sc1_st=""):
    ld = (" " + sc1_ld) if sc1_ld else ""
    st = (" " + sc1_st) if sc1_st else ""
    a("s_and_b32 s52, s2, 7")
    a("s_lshr_b32 s53, s2, 3")
    a("s_and_b32 s54, s53, 1")
    a("s_lshl_b32 s52, s52, 1")
    a("s_add_u32 s52, s52, s54")
    a("s_lshr_b32 s53, s53, 1")
    a(f"s_and_b32 s54, s{S_WAVE}, 3")
    a(f"s_lshr_b32 s55, s{S_WAVE}, 2")
    QF, CI, S0, S1, P, KF, VF, O = 8, 16, 32, 48, 64, 72, 80, 88
    VC, VN, VL16 = 2, 3, 4
    a(f"v_lshlrev_b32 v{VL16}, 4, v{V_LANE}")
    a("s_lshl_b32 s56, s52, 6")
    a("s_lshl_b32 s57, s53, 2")
    a("s_add_u32 s56, s56, s57")
    a("s_add_u32 s56, s56, s54")
    a("s_lshl_b32 s56, s56, 11")
    a(f"s_add_u32 s56, s56, {WS_Q}")
    a(f"buffer_load_dwordx4 v[{QF}:{QF+3}], v{VL16}, s[{S_WS}:{S_WS+3}], s56 offen{ld}")
    a(f"buffer_load_dwordx4 v[{QF+4}:{QF+7}], v{VL16}, s[{S_WS}:{S_WS+3}], s56 offen offset:1024{ld}")
    a("s_lshl_b32 s57, s52, 18")
    a("s_lshl_b32 s58, s55, 5")
    a("s_add_u32 s58, s58, s54")
    a("s_lshl_b32 s58, s58, 12")
    a("s_add_u32 s57, s57, s58")
    a(f"s_add_u32 s57, s57, {WS_KV}")
    a(f"s_lshl_b32 s58, s{S_WAVE}, 12")
    def dma_stage(slot_sreg_or_imm):
        a(f"s_add_u32 m0, s58, {slot_sreg_or_imm}")
        a("s_nop 0")
        for n in range(4):
            a(f"buffer_load_dwordx4 v{VL16}, s[{S_WS}:{S_WS+3}], s57 offen offset:{n*1024} lds{ld}")
        a("s_add_u32 s57, s57, 16384")
    dma_stage(0)
    dma_stage(32768)
    for i in range(16):
        a(f"v_mov_b32 v{CI+i}, 0")
        a(f"v_mov_b32 v{O+i}, 0")
    a("s_lshl_b32 s59, s55, 14")
    a(f"v_add_u32 v{VC}, s59, v{VL16}")
    a(f"v_add_u32 v{VN}, 32768, v{VC}")
    a("s_mov_b32 s60, 65536")
    a("s_mov_b32 s61, 0")
    a("s_waitcnt vmcnt(4)")
    a("s_barrier")
    def rdK(base, tile):
        a(f"ds_read_b128 v[{KF}:{KF+3}], v{base} offset:{tile*4096}")
        a(f"ds_read_b128 v[{KF+4}:{KF+7}], v{base} offset:{tile*4096+1024}")
    def rdV(base, tile):
        a(f"ds_read_b128 v[{VF}:{VF+3}], v{base} offset:{tile*4096+2048}")
        a(f"ds_read_b128 v[{VF+4}:{VF+7}], v{base} offset:{tile*4096+3072}")
    def qk1(Sx): a(f"v_mfma_f32_32x32x16_bf16 v[{Sx}:{Sx+15}], v[{KF}:{KF+3}], v[{QF}:{QF+3}], v[{CI}:{CI+15}]")
    def qk2(Sx): a(f"v_mfma_f32_32x32x16_bf16 v[{Sx}:{Sx+15}], v[{KF+4}:{KF+7}], v[{QF+4}:{QF+7}], v[{Sx}:{Sx+15}]")
    rdK(VC, 0)
    a("s_waitcnt lgkmcnt(0)")
    qk1(S0); qk2(S0)
    rdK(VC, 1)
    rdV(VC, 0)
    a.raw(".p2align 6")
    a.label(f"L_{uid}_loop")
    for i in range(4):
        Sc = S0 if i % 2 == 0 else S1
        Sn = S1 if i % 2 == 0 else S0
        if i == 2:
            a("s_waitcnt vmcnt(0)")
            a("s_barrier")
            a("s_cmp_ge_u32 s61, 6")
            a(f"s_cbranch_scc1 L_{uid}_nodma")
            dma_stage("s60")
            a("s_add_u32 s60, s60, 32768")
            a("s_cmp_eq_u32 s60, 98304")
            a("s_cselect_b32 s60, 0, s60")
            a.label(f"L_{uid}_nodma")
        a("s_waitcnt lgkmcnt(2)")
        qk1(Sn)
        for e in range(0, 4): a(f"v_exp_f32 v{Sc+e}, v{Sc+e}")
        qk2(Sn)
        if i < 2: rdK(VC, i+2)
        else: rdK(VN, i-2)
        for e in range(4, 8): a(f"v_exp_f32 v{Sc+e}, v{Sc+e}")
        for e in range(0, 4): a(f"v_cvt_pk_bf16_f32 v{P+e}, v{Sc+2*e}, v{Sc+2*e+1}")
        for e in range(8, 12): a(f"v_exp_f32 v{Sc+e}, v{Sc+e}")
        a("s_waitcnt lgkmcnt(2)")
        a(f"v_mfma_f32_32x32x16_bf16 v[{O}:{O+15}], v[{VF}:{VF+3}], v[{P}:{P+3}], v[{O}:{O+15}]")
        for e in range(12, 16): a(f"v_exp_f32 v{Sc+e}, v{Sc+e}")
        for e in range(4, 8): a(f"v_cvt_pk_bf16_f32 v{P+e}, v{Sc+2*e}, v{Sc+2*e+1}")
        a("s_nop 1")
        a(f"v_mfma_f32_32x32x16_bf16 v[{O}:{O+15}], v[{VF+4}:{VF+7}], v[{P+4}:{P+7}], v[{O}:{O+15}]")
        if i < 3: rdV(VC, i+1)
        else: rdV(VN, 0)
    a(f"v_mov_b32 v{VC}, v{VN}")
    a(f"v_add_u32 v{VN}, 32768, v{VN}")
    a(f"s_add_u32 s62, s59, {98304}")
    a(f"v_add_u32 v5, s62, v{VL16}")
    a(f"v_cmp_eq_u32 vcc, v{VN}, v5")
    a(f"v_add_u32 v6, s59, v{VL16}")
    a("s_add_u32 s61, s61, 1")
    a(f"v_cndmask_b32 v{VN}, v{VN}, v6, vcc")
    a("s_cmp_lt_u32 s61, 8")
    a(f"s_cbranch_scc1 L_{uid}_loop")
    a("s_waitcnt lgkmcnt(0)")
    a("s_nop 15")
    a("s_lshl_b32 s62, s54, 12")
    a(f"s_add_u32 s62, s62, {LA_COMB}")
    a(f"v_add_u32 v5, s62, v{VL16}")
    a("s_cmp_eq_u32 s55, 0")
    a(f"s_cbranch_scc1 L_{uid}_c0")
    for g in range(4): a(f"ds_write_b128 v5, v[{O+4*g}:{O+4*g+3}] offset:{1024*g}")
    a("s_waitcnt lgkmcnt(0)")
    a.label(f"L_{uid}_c0")
    a("s_barrier")
    a("s_cmp_eq_u32 s55, 0")
    a(f"s_cbranch_scc0 L_{uid}_end")
    for g in range(4): a(f"ds_read_b128 v[{S0+4*g}:{S0+4*g+3}], v5 offset:{1024*g}")
    a("s_waitcnt lgkmcnt(0)")
    for i in range(16): a(f"v_add_f32 v{O+i}, v{O+i}, v{S0+i}")
    a(f"v_mov_b32 v6, v{O+12}")
    a(f"v_mov_b32 v7, v{O+12}")
    a("s_nop 1")
    a("v_permlane32_swap_b32 v6, v7")
    a("s_nop 1")
    a("v_rcp_f32 v7, v7")
    a("s_nop 0")
    for i in range(16): a(f"v_mul_f32 v{O+i}, v{O+i}, v7")
    for i in range(8): a(f"v_cvt_pk_bf16_f32 v{P+i}, v{O+2*i}, v{O+2*i+1}")
    a(f"v_cmp_lt_u32 vcc, 31, v{V_LANE}")
    a("v_mov_b32 v6, 0")
    a("s_nop 0")
    a(f"v_cndmask_b32 v{P+6}, v{P+6}, v6, vcc")
    a(f"v_cndmask_b32 v{P+7}, v{P+7}, v6, vcc")
    a("s_lshl_b32 s62, s53, 2")
    a("s_add_u32 s62, s62, s54")
    a("s_lshl_b32 s62, s62, 4")
    a("s_add_u32 s62, s62, s52")
    a("s_lshl_b32 s62, s62, 11")
    a(f"s_add_u32 s62, s62, {WS_O}")
    a(f"buffer_store_dwordx4 v[{P}:{P+3}], v{VL16}, s[{S_WS}:{S_WS+3}], s62 offen{st}")
    a(f"buffer_store_dwordx4 v[{P+4}:{P+7}], v{VL16}, s[{S_WS}:{S_WS+3}], s62 offen offset:1024{st}")
    a.label(f"L_{uid}_end")
```

```python
from common import *
L3_WO = 0
L3_O = 57 * 1024
L3_Z = L3_O + 65536
L3_B = L3_Z + 8192
L3_SIZE = L3_B + 8192

def map3(a):
    a("s_and_b32 s52, s2, 7")
    a("s_lshr_b32 s53, s2, 3")
    a("s_mul_i32 s54, s53, 9363")
    a("s_lshr_b32 s54, s54, 16")
    a("s_mul_i32 s55, s54, 7")
    a("s_sub_u32 s55, s53, s55")
    a("s_lshl_b32 s52, s52, 2")
    a("s_add_u32 s54, s54, s52")

def k3_load_wo(a, uid="k3"):
    a(f"v_and_b32 v3, 7, v{V_LANE}")
    a(f"v_bfe_u32 v4, v{V_LANE}, 4, 1")
    a("v_lshlrev_b32 v4, 2, v4")
    a("v_xor_b32 v3, v3, v4")
    a("v_lshlrev_b32 v3, 4, v3")
    a(f"v_lshrrev_b32 v4, 3, v{V_LANE}")
    a("s_movk_i32 s56, 896")
    a("v_mul_lo_u32 v2, v4, s56")
    a("v_add_u32 v2, v2, v3")
    a(f"s_lshl_b32 s57, s{S_WAVE}, 10")
    a(f"s_mul_i32 s58, s{S_WAVE}, {8*896}")
    a("s_lshl_b32 s59, s55, 7")
    a("s_add_u32 s58, s58, s59")
    for k in range(8):
        if k == 7:
            a(f"s_cmp_ge_u32 s{S_WAVE}, 1")
            a(f"s_cbranch_scc1 L_{uid}_wodone")
        a(f"s_add_u32 m0, s57, {L3_WO + k*8192}")
        a(f"s_add_u32 s60, s58, {k*64*896}")
        a(f"buffer_load_dwordx4 v2, s[{S_WO}:{S_WO+3}], s60 offen lds")
    a.label(f"L_{uid}_wodone")

def k3_load_oz(a, uid="k3", sc1=""):
    st = (" " + sc1) if sc1 else ""
    a(f"v_lshlrev_b32 v5, 4, v{V_LANE}")
    a("s_lshl_b32 s57, s54, 16")
    a(f"s_lshl_b32 s58, s{S_WAVE}, 13")
    a("s_add_u32 s57, s57, s58")
    a(f"s_add_u32 s57, s57, {WS_O}")
    a(f"s_add_u32 m0, s58, {L3_O}")
    a("s_nop 0")
    for n in range(4): a(f"buffer_load_dwordx4 v5, s[{S_WS}:{S_WS+3}], s57 offen offset:{1024*n} lds{st}")
    a("s_add_u32 s57, s57, 4096")
    a(f"s_add_u32 m0, s58, {L3_O + 4096}")
    a("s_nop 0")
    for n in range(4): a(f"buffer_load_dwordx4 v5, s[{S_WS}:{S_WS+3}], s57 offen offset:{1024*n} lds{st}")

def k3_load_z(a, uid="k3", sc1=""):
    st = (" " + sc1) if sc1 else ""
    a("v_lshl_add_u32 v6, v4, 12, v3")
    a("s_lshl_b32 s57, s55, 6")
    a(f"s_lshl_b32 s58, s{S_WAVE}, 3")
    a("s_add_u32 s57, s57, s58")
    a("s_lshl_b32 s57, s57, 12")
    a("s_lshl_b32 s58, s54, 7")
    a("s_add_u32 s57, s57, s58")
    a(f"s_add_u32 s57, s57, {WS_Z}")
    a(f"s_lshl_b32 s58, s{S_WAVE}, 10")
    a(f"s_add_u32 m0, s58, {L3_Z}")
    a("s_nop 0")
    a(f"buffer_load_dwordx4 v6, s[{S_WS}:{S_WS+3}], s57 offen lds{st}")

def k3_main(a, uid="k3"):
    a(f"s_cmp_ge_u32 s{S_WAVE}, 4")
    a(f"s_cbranch_scc1 L_{uid}_post")
    a(f"s_and_b32 s56, s{S_WAVE}, 1")
    a(f"s_lshr_b32 s57, s{S_WAVE}, 1")
    VO, VW = 8, 9
    a("s_lshl_b32 s58, s56, 15")
    a(f"s_add_u32 s58, s58, {L3_O}")
    a(f"v_lshlrev_b32 v{VO}, 4, v{V_LANE}")
    a(f"v_add_u32 v{VO}, s58, v{VO}")
    a(f"v_lshrrev_b32 v10, 5, v{V_LANE}")
    a(f"v_bfe_u32 v11, v{V_LANE}, 2, 2")
    a("v_lshl_add_u32 v10, v10, 2, v11")
    a("v_lshlrev_b32 v10, 7, v10")
    a(f"v_bfe_u32 v12, v{V_LANE}, 4, 1")
    a(f"v_bfe_u32 v13, v{V_LANE}, 1, 1")
    a("v_lshl_add_u32 v12, v12, 1, v13")
    a("s_lshl_b32 s58, s57, 2")
    a("v_add_u32 v12, s58, v12")
    a("v_lshrrev_b32 v11, 1, v11")
    a("v_lshlrev_b32 v11, 2, v11")
    a("v_xor_b32 v12, v12, v11")
    a("v_lshl_add_u32 v10, v12, 4, v10")
    a(f"v_and_b32 v13, 1, v{V_LANE}")
    a(f"v_lshl_add_u32 v{VW}, v13, 3, v10")
    ACC = 16
    NB = 4
    OB = 32; WB = 48
    for i in range(16): a(f"v_mov_b32 v{ACC+i}, 0")
    def rd(k):
        h, t = k // 2, k % 2
        b = k % NB
        a(f"ds_read_b128 v[{OB+4*b}:{OB+4*b+3}], v{VO} offset:{h*2048 + t*1024}")
        for jj in range(2):
            a(f"ds_read_b64_tr_b16 v[{WB+4*b+2*jj}:{WB+4*b+2*jj+1}], v{VW} offset:{(28*h + 16*t + 8*jj)*128}")
    a("s_waitcnt vmcnt(0)")
    a("s_barrier")
    for k in range(NB-1): rd(k)
    for k in range(32):
        if k + NB - 1 < 32:
            rd(k + NB - 1)
            a(f"s_waitcnt lgkmcnt({3*(NB-1)})")
        else:
            a(f"s_waitcnt lgkmcnt({3*(31-k)})")
        b = k % NB
        a(f"v_mfma_f32_32x32x16_bf16 v[{ACC}:{ACC+15}], v[{WB+4*b}:{WB+4*b+3}], v[{OB+4*b}:{OB+4*b+3}], v[{ACC}:{ACC+15}]")
    a("s_nop 15")
    P = 32
    for i in range(8): a(f"v_cvt_pk_bf16_f32 v{P+i}, v{ACC+2*i}, v{ACC+2*i+1}")
    a(f"v_and_b32 v10, 31, v{V_LANE}")
    a("s_lshl_b32 s58, s54, 6")
    a("s_lshl_b32 s59, s56, 5")
    a("s_add_u32 s58, s58, s59")
    a("v_add_u32 v10, s58, v10")
    a("s_movk_i32 s59, 1792")
    a("v_mul_lo_u32 v10, v10, s59")
    a(f"v_lshrrev_b32 v11, 5, v{V_LANE}")
    a("v_lshl_add_u32 v10, v11, 4, v10")
    a("s_lshl_b32 s58, s55, 7")
    a("s_lshl_b32 s59, s57, 6")
    a("s_add_u32 s58, s58, s59")
    a("s_add_u32 s58, s58, 896")
    a(f"v_permlane32_swap_b32 v{P}, v{P+2}")
    a(f"v_permlane32_swap_b32 v{P+1}, v{P+3}")
    a(f"v_permlane32_swap_b32 v{P+4}, v{P+6}")
    a(f"v_permlane32_swap_b32 v{P+5}, v{P+7}")
    a("s_nop 1")
    a(f"buffer_store_dwordx4 v[{P}:{P+3}], v10, s[{S_OUT}:{S_OUT+3}], s58 offen")
    a(f"buffer_store_dwordx4 v[{P+4}:{P+7}], v10, s[{S_OUT}:{S_OUT+3}], s58 offen offset:32")
    a(f"s_branch L_{uid}_end")
    a.label(f"L_{uid}_post")
    a(f"s_sub_u32 s56, s{S_WAVE}, 4")
    a(f"v_lshrrev_b32 v10, 3, v{V_LANE}")
    a("s_lshl_b32 s58, s54, 6")
    a("s_lshl_b32 s59, s56, 4")
    a("s_add_u32 s58, s58, s59")
    a("v_add_u32 v10, s58, v10")
    a(f"v_and_b32 v11, 7, v{V_LANE}")
    a("v_lshlrev_b32 v11, 4, v11")
    a("s_lshl_b32 s58, s55, 7")
    a("v_add_u32 v11, s58, v11")
    a("s_movk_i32 s59, 896")
    a("v_mul_lo_u32 v12, v10, s59")
    a("v_add_u32 v12, v12, v11")
    a(f"buffer_load_dwordx4 v[16:19], v12, s[{S_AQ}:{S_AQ+3}], 0 offen")
    a(f"v_add_u32 v12, {8*896}, v12")
    a(f"buffer_load_dwordx4 v[20:23], v12, s[{S_AQ}:{S_AQ+3}], 0 offen")
    a("s_movk_i32 s59, 1792")
    a("v_mul_lo_u32 v13, v10, s59")
    a("v_add_u32 v13, v13, v11")
    a(f"v_lshrrev_b32 v14, 4, v{V_LANE}")
    a(f"v_bfe_u32 v15, v{V_LANE}, 2, 2")
    a("v_lshl_add_u32 v14, v14, 3, v15")
    a("v_lshlrev_b32 v14, 7, v14")
    a(f"v_bfe_u32 v24, v{V_LANE}, 1, 1")
    a("s_lshl_b32 s58, s56, 1")
    a("v_add_u32 v24, s58, v24")
    a("v_lshrrev_b32 v15, 1, v15")
    a("v_lshlrev_b32 v15, 2, v15")
    a("v_xor_b32 v24, v24, v15")
    a("v_lshl_add_u32 v14, v24, 4, v14")
    a(f"v_and_b32 v24, 1, v{V_LANE}")
    a("v_lshl_add_u32 v14, v24, 3, v14")
    a(f"v_add_u32 v14, {L3_Z}, v14")
    a(f"v_and_b32 v24, 15, v{V_LANE}")
    a(f"v_lshrrev_b32 v25, 4, v{V_LANE}")
    a("v_and_b32 v26, 7, v24")
    a("v_xor_b32 v25, v25, v26")
    a("v_xor_b32 v26, 4, v25")
    a("s_lshl_b32 s58, s56, 11")
    a(f"s_add_u32 s58, s58, {L3_B}")
    a("v_lshlrev_b32 v24, 7, v24")
    a("v_add_u32 v24, s58, v24")
    a("v_lshl_add_u32 v25, v25, 4, v24")
    a("v_lshl_add_u32 v26, v26, 4, v24")
    a(f"v_lshrrev_b32 v27, 3, v{V_LANE}")
    a(f"v_and_b32 v28, 7, v{V_LANE}")
    a("v_xor_b32 v28, v28, v27")
    a("v_lshlrev_b32 v28, 4, v28")
    a("v_lshl_add_u32 v28, v27, 7, v28")
    a("v_add_u32 v28, s58, v28")
    a("s_waitcnt vmcnt(0)")
    a("s_barrier")
    for u in range(2):
        for jj in range(2):
            a(f"ds_read_b64_tr_b16 v[{32+4*u+2*jj}:{33+4*u+2*jj}], v14 offset:{(32*u + 4*jj)*128}")
    a("s_waitcnt lgkmcnt(0)")
    a("ds_write_b128 v25, v[32:35]")
    a("ds_write_b128 v26, v[36:39]")
    a("s_waitcnt lgkmcnt(0)")
    a("ds_read_b128 v[40:43], v28")
    a("ds_read_b128 v[44:47], v28 offset:1024")
    a("s_waitcnt lgkmcnt(0)")
    for n in range(2):
        Z, Q = 40 + 4*n, 16 + 4*n
        for r in range(4):
            a(f"v_lshlrev_b32 v48, 16, v{Z+r}")
            a(f"v_and_b32 v49, 0xffff0000, v{Z+r}")
            a(f"v_lshlrev_b32 v50, 16, v{Q+r}")
            a(f"v_and_b32 v51, 0xffff0000, v{Q+r}")
            a("v_mul_f32 v48, v48, v50")
            a("v_mul_f32 v49, v49, v51")
            a(f"v_cvt_pk_bf16_f32 v{52+4*n+r}, v48, v49")
    a(f"buffer_store_dwordx4 v[52:55], v13, s[{S_OUT}:{S_OUT+3}], 0 offen")
    a(f"v_add_u32 v13, {8*1792}, v13")
    a(f"buffer_store_dwordx4 v[56:59], v13, s[{S_OUT}:{S_OUT+3}], 0 offen")
    a.label(f"L_{uid}_end")
```

```python
import sys
sys.path.insert(0, "gen")
from common import *
import k1, k2, k3
NAME = "concat_heads__ssm_conv_h3__softmax_full_mha__prompt"
HDR = open(f"cdna_kernels/{NAME}.s.ref").read().split("; Override launch geometry")[0]
def k1_kernel():
    a = Asm(); prologue(a, 256, "L_k1_exit"); k1.phase1(a); k1.phase1_gemm(a); a.label("L_k1_exit"); a("s_endpgm"); return a.text()
def k2_kernel():
    a = Asm(); prologue(a, 256, "L_k2_exit")
    a("s_cmp_ge_u32 s2, 224"); a("s_cbranch_scc1 L_k2_noconv")
    k2.conv_build_h(a); k2.conv_load_u(a); k2.conv_main(a)
    a("s_waitcnt lgkmcnt(0)");
    a.label("L_k2_noconv")
    a("s_barrier")
    k2.attention(a); a.label("L_k2_exit"); a("s_endpgm"); return a.text()
def k3_kernel():
    a = Asm(); prologue(a, 224, "L_k3_exit"); k3.map3(a); k3.k3_load_wo(a); k3.k3_load_oz(a); k3.k3_load_z(a); k3.k3_main(a); a.label("L_k3_exit"); a("s_endpgm"); return a.text()
def empty_kernel():
    return "  s_endpgm\n"
mode = sys.argv[1] if len(sys.argv) > 1 else "3"
ks = {"p1_kernel": (k1_kernel(), 128, (256, 512, k1.L1_SIZE)),
      "p2_kernel": (k2_kernel(), 192, (256, 512, max(k2.LA_SIZE, k2.LC_SIZE))),
      "p3_kernel": (k3_kernel(), 128, (224, 512, k3.L3_SIZE))}
order = ["p1_kernel", "p2_kernel", "p3_kernel"]
nextra = int(sys.argv[2]) if len(sys.argv) > 2 else 0
if nextra:
    ks["nop_kernel"] = (empty_kernel(), 32, (256, 512, 0))
    order += ["nop_kernel"] * nextra
out = HDR + "".join(f"; @launch kernel={k} grid=({ks[k][2][0]},1,1) block=({ks[k][2][1]},1,1) lds={ks[k][2][2]}\n" for k in order)
out += '.amdgcn_target "amdgcn-amd-amdhsa--gfx950"\n.text\n'
for k, (t, v, _) in ks.items(): out += kernel_head(k) + t
out += '.section .rodata,"a"\n'
for k, (t, v, _) in ks.items(): out += kernel_desc(k, v)
dst = sys.argv[3] if len(sys.argv) > 3 else f"cdna_kernels/{NAME}.s"
open(dst, "w").write(out)
print("wrote", dst, len(out))
```

```python
import os, struct
from asmlib import *
S = 2048; D = 448; H = 16; DH = 28
WS_Q  = 0x000000; WS_KV = 0x200000; WS_U  = 0x600000; WS_Z  = 0x800000; WS_O  = 0xA00000
WS_STAMP = 0xC00000
WS_FLAG = 0xD00000
FL_A, FL_B, FL_C, FL_D, FL_N = [WS_FLAG + 0x1000*i for i in range(5)]
WS_SIZE = 0xE00000
S_WS, S_X, S_WQKV, S_AK, S_AV, S_SH, S_AQ, S_SK, S_SD, S_WO, S_OUT, S_DBG = [4 + 4*i for i in range(12)]
SRD_INFO = [(S_AQ, 0, 1835008), (S_AK, 8, 1835008), (S_AV, 16, 1835008), (S_SH, 24, 3584),
    (S_SK, 32, 1835008), (S_SD, 40, 896), (S_X, 48, 1835008), (S_WQKV, 56, 1204224),
    (S_WO, 64, 401408), (S_OUT, 72, 3670016), (S_DBG, 80, 256), (S_WS, 88, WS_SIZE)]
S_WAVE = 3; V_LANE = 1; S_NONCE = 93; S_NRAW = 63
SC1 = " sc1"
QSCALE = float(28 ** -0.5 * 1.4426950408889634)
def f32hex(x): return "0x%08x" % struct.unpack("<I", struct.pack("<f", x))[0]
def srd(b): return f"s[{b}:{b+3}]"
SLOT = 28672; XB = 16384; NSLOT = 3
L1_BOUNCE = NSLOT * SLOT
RING = 0
LC_RED = 65536
HC_PITCH = 4160; HC_CH = 4 * HC_PITCH
LC_HC = 98304
LC_U = LC_HC + 2 * HC_CH
U_PITCH = 4608
LC_END = LC_U + 2 * U_PITCH
L3_WO = 98304
LA_COMB = 0
L3_O = 0; L3_Z = 65536; L3_B = L3_Z + 8192
LDS_SIZE = L3_WO + 57 * 1024

STAMP_ON = False
NSTAMP = 11
SPIN_MAX = 1 << 16
class G:
    uid = 0
def lab(p):
    G.uid += 1
    return f"L_{p}_{G.uid}"
def stamp(a, idx):
    if not STAMP_ON: return
    a(f"s_memtime s[{64+2*idx}:{65+2*idx}]")
def stamp_begin(a):
    if not STAMP_ON: return
    for i in range(64, 88): a(f"s_mov_b32 s{i}, 0")
    a("s_memrealtime s[86:87]")
    a("s_waitcnt lgkmcnt(0)")
def stamp_flush(a):
    if not STAMP_ON: return
    a("s_memrealtime s[96:97]")
    a("s_waitcnt lgkmcnt(0)")
    a("s_lshl_b32 s98, s2, 3")
    a(f"s_add_u32 s98, s98, s{S_WAVE}")
    a("s_lshl_b32 s98, s98, 6")
    a(f"s_add_u32 s98, s98, {WS_STAMP}")
    for i in range(NSTAMP): a(f"v_mov_b32 v{8+i}, s{64+2*i}")
    a(f"v_mov_b32 v{8+11}, s86")
    a(f"v_mov_b32 v{8+12}, s96")
    a("v_mov_b32 v2, 0")
    a("s_mov_b64 exec, 1")
    for g in range(3): a(f"buffer_store_dwordx4 v[{8+4*g}:{11+4*g}], v2, {srd(S_WS)}, s98 offen offset:{16*g}")
    a(f"buffer_store_dword v20, v2, {srd(S_WS)}, s98 offen offset:48")
    a("s_mov_b64 exec, -1")

def prologue(a, exit_label):
    a(f"s_cmp_ge_u32 s2, 256")
    a(f"s_cbranch_scc1 {exit_label}")
    a("s_load_dwordx16 s[64:79], s[0:1], 0")
    a("s_load_dwordx8 s[80:87], s[0:1], 64")
    a("v_lshrrev_b32 v2, 6, v0")
    a(f"v_and_b32 v{V_LANE}, 63, v0")
    a(f"v_readfirstlane_b32 s{S_WAVE}, v2")
    for (b, off, nb) in SRD_INFO:
        a(f"s_mov_b32 s{b+2}, {nb}")
        a(f"s_mov_b32 s{b+3}, 0x00020000")
    a("s_waitcnt lgkmcnt(0)")
    for (b, off, nb) in SRD_INFO:
        a(f"s_mov_b32 s{b}, s{64 + off//4}")
        a(f"s_mov_b32 s{b+1}, s{64 + off//4 + 1}")
    a(f"s_add_u32 s52, s{S_WS}, {FL_N}")
    a(f"s_addc_u32 s53, s{S_WS+1}, 0")
    a(f"s_load_dword s{S_NRAW}, s[52:53], 0")

def nonce_ready(a):
    a(f"s_mul_i32 s{S_NONCE}, s{S_NRAW}, 0x9E3779B1")
    a(f"s_add_u32 s{S_NONCE}, s{S_NONCE}, 0x7F4A7C15")

def signal(a, base, idx_sreg):
    L = lab("sig")
    a(f"s_cmp_lg_u32 s{S_WAVE}, 0")
    a(f"s_cbranch_scc1 {L}")
    a(f"s_lshl_b32 s94, {idx_sreg}, 4")
    a(f"s_add_u32 s94, s94, {base}")
    a(f"v_mov_b32 v250, s{S_NONCE}")
    a("v_mov_b32 v251, 0")
    a("s_mov_b64 exec, 1")
    a(f"buffer_store_dword v250, v251, {srd(S_WS)}, s94 offen sc1")
    a("s_mov_b64 exec, -1")
    a.label(L)

def poll(a, vaddr):
    L = lab("poll"); E = lab("pollx")
    a("s_mov_b32 s94, 0")
    a.label(L)
    a(f"buffer_load_dword v249, v{vaddr}, {srd(S_WS)}, 0 offen sc1")
    a("s_add_u32 s94, s94, 1")
    a(f"s_cmp_gt_u32 s94, {SPIN_MAX}")
    a("s_waitcnt vmcnt(0)")
    a(f"s_cbranch_scc1 {E}")
    a(f"v_cmp_ne_u32 vcc, s{S_NONCE}, v249")
    a(f"s_cbranch_vccnz {L}")
    a.label(E)

def phase1(a):
    a("s_and_b32 s52, s2, 7")
    a("s_lshr_b32 s53, s2, 3")
    a("s_lshr_b32 s54, s52, 1")
    a("s_lshl_b32 s54, s54, 2")
    a("s_and_b32 s55, s53, 3")
    a("s_add_u32 s54, s54, s55")
    a("s_and_b32 s55, s52, 1")
    a("s_lshl_b32 s55, s55, 3")
    a("s_lshr_b32 s56, s53, 2")
    a("s_add_u32 s55, s55, s56")
    Lg = lab("gemmw"); Ldone = lab("p1done")
    a(f"s_cmp_lt_u32 s{S_WAVE}, 4")
    a(f"s_cbranch_scc1 {Lg}")
    a(f"s_sub_u32 s58, s{S_WAVE}, 4")
    a(f"v_lshrrev_b32 v50, 3, v{V_LANE}")
    a("s_movk_i32 s59, 896")
    a("v_mul_lo_u32 v50, v50, s59")
    a(f"v_and_b32 v51, 7, v{V_LANE}")
    a(f"v_lshrrev_b32 v52, 4, v{V_LANE}")
    a("v_xor_b32 v51, v51, v52")
    a("v_xor_b32 v52, 4, v51")
    a("v_lshl_add_u32 v51, v51, 4, v50")
    a("v_lshl_add_u32 v52, v52, 4, v50")
    for m in range(3):
        a(f"v_add_u32 v53, {64*m}, v{V_LANE}")
        a("v_mul_u32_u24 v54, 5462, v53")
        a("v_lshrrev_b32 v54, 16, v54")
        a("v_mul_u32_u24 v55, 12, v54")
        a("v_sub_u32 v55, v53, v55")
        a("v_mul_u32_u24 v54, 2688, v54")
        a(f"v_lshl_add_u32 v{56+m}, v55, 4, v54")
    a("s_lshr_b32 s88, s53, 2")
    a("s_and_b32 s89, s53, 3")
    a("s_lshl_b32 s89, s89, 1")
    a("s_add_u32 s88, s88, s89")
    a("s_cmp_ge_u32 s88, 7")
    a("s_cselect_b32 s89, 7, 0")
    a("s_sub_u32 s88, s88, s89")
    a("s_lshl_b32 s60, s54, 7")
    a("s_lshl_b32 s61, s58, 5")
    a("s_add_u32 s60, s60, s61")
    a("s_mul_i32 s60, s60, 896")
    a("s_mul_i32 s61, s58, 43008")
    a("s_mul_i32 s62, s55, 168")
    a("s_add_u32 s61, s61, s62")
    a("s_lshl_b32 s62, s58, 12")
    a("s_mul_i32 s59, s58, 3072")
    def dma_chunk(k):
        slot = (k % NSLOT) * SLOT
        a("s_lshl_b32 s90, s88, 7")
        a("s_add_u32 s90, s90, s60")
        a(f"s_mul_i32 s91, s88, {64*2688}")
        a("s_add_u32 s91, s91, s61")
        for n in range(4):
            a(f"s_add_u32 m0, s62, {slot + n*1024}")
            a(f"s_add_u32 s92, s90, {n*8*896}")
            a(f"buffer_load_dwordx4 v{51 + (n & 1)}, {srd(S_X)}, s92 offen lds")
        for m in range(3):
            a(f"s_add_u32 m0, s59, {slot + XB + m*1024}")
            a("s_nop 0")
            a(f"buffer_load_dwordx4 v{56+m}, {srd(S_WQKV)}, s91 offen lds")
        a("s_add_u32 s88, s88, 1")
        a("s_cmp_eq_u32 s88, 7")
        a("s_cselect_b32 s88, 0, s88")
    for k in range(3): dma_chunk(k)
    stamp(a, 1)
    NH = 6
    def h_loads():
        Ls = lab("noh")
        a("s_lshl_b32 s90, s2, 1")
        a("s_cmp_ge_u32 s2, 224")
        a("s_cselect_b32 s90, 0, s90")
        a("s_lshl_b32 s90, s90, 12")
        a("s_lshl_b32 s91, s58, 6")
        a(f"v_add_u32 v2, s91, v{V_LANE}")
        a("v_lshlrev_b32 v3, 4, v2")
        a("v_subrev_u32 v4, 16, v3")
        a("v_cmp_eq_u32 vcc, 0, v2")
        a("v_mov_b32 v5, 0x80000000")
        a("s_nop 0")
        a("v_cndmask_b32 v4, v4, v5, vcc")
        a(f"v_cmp_eq_u32 vcc, 0, v{V_LANE}")
        a("v_mov_b32 v6, 4080")
        a("s_nop 0")
        a("v_cndmask_b32 v6, v5, v6, vcc")
        for ch in range(2):
            a(f"s_add_u32 s44, s{S_SK}, s90") if False else None
        for ch in range(2):
            a(f"s_add_u32 s{HS[ch]}, s{S_SK}, s90")
            a(f"s_addc_u32 s{HS[ch]+1}, s{S_SK+1}, 0")
            a(f"s_movk_i32 s{HS[ch]+2}, 4096")
            a(f"s_mov_b32 s{HS[ch]+3}, 0x00020000")
            a("s_add_u32 s90, s90, 4096")
            D0 = 8 + 12*ch
            a(f"buffer_load_dwordx4 v[{D0}:{D0+3}], v4, {srd(HS[ch])}, 0 offen")
            a(f"buffer_load_dwordx4 v[{D0+4}:{D0+7}], v3, {srd(HS[ch])}, 0 offen")
            a(f"buffer_load_dwordx4 v[{D0+8}:{D0+11}], v6, {srd(HS[ch])}, 0 offen")
    HS = [S_AK, S_AV]
    waits = [14, 7, 7, 7, 7, 7 + NH, NH]
    for k in range(7):
        a(f"s_waitcnt vmcnt({waits[k]})")
        a("s_barrier")
        if 1 <= k <= 4: dma_chunk(k + 2)
        if k == 4: h_loads()
    a("s_waitcnt vmcnt(0)")
    Lnh = lab("nohb")
    a("s_cmp_ge_u32 s2, 224")
    a(f"s_cbranch_scc1 {Lnh}")
    a(f"v_cmp_eq_u32 vcc, 0, v{V_LANE}")
    a("v_mov_b32 v7, 4112")
    a("v_add_u32 v3, 16, v3")
    a("v_cndmask_b32 v7, 0, v7, vcc")
    def emit(Dr, dst, base):
        for j in range(4): a(f"v_alignbit_b32 v{36+j}, v{Dr+j+1}, v{Dr+j}, 16")
        for j in range(4): a(f"v_alignbit_b32 v{40+j}, v{Dr+j+2}, v{Dr+j+1}, 16")
        for j in range(4): a(f"v_mov_b32 v{44+j}, v{Dr+j+1}")
        a(f"ds_write_b128 v{dst}, v[36:39] offset:{base}")
        a(f"ds_write_b128 v{dst}, v[44:47] offset:{base+HC_PITCH}")
        a(f"ds_write_b128 v{dst}, v[40:43] offset:{base+2*HC_PITCH}")
        a(f"ds_write_b128 v{dst}, v[{Dr+2}:{Dr+5}] offset:{base+3*HC_PITCH}")
        a("s_waitcnt lgkmcnt(0)")
    a(f"v_add_u32 v3, {LC_HC}, v3")
    a(f"v_add_u32 v7, {LC_HC}, v7")
    for ch in range(2):
        emit(8 + 12*ch, 3, ch*HC_CH)
    Lnt = lab("notail")
    a("s_cmp_eq_u32 s58, 3")
    a(f"s_cbranch_scc0 {Lnt}")
    for ch in range(2):
        D0 = 8 + 12*ch + 8
        for j in range(4): a(f"v_mov_b32 v{60+j}, v{D0+j}")
        for j in range(4): a(f"v_mov_b32 v{64+j}, 0")
        emit(60, 7, ch*HC_CH)
    a.label(Lnt)
    a.label(Lnh)
    a(f"s_branch {Ldone}")
    a.label(Lg)
    Lnp = lab("nopre")
    a("s_mul_i32 s56, s2, 9363")
    a("s_lshr_b32 s56, s56, 16")
    a("s_mul_i32 s57, s56, 7")
    a("s_sub_u32 s57, s2, s57")
    a("s_cmp_ge_u32 s2, 224")
    a(f"s_cbranch_scc1 {Lnp}")
    a(f"v_lshrrev_b32 v2, 3, v{V_LANE}")
    a(f"s_lshl_b32 s58, s{S_WAVE}, 4")
    a("v_add_u32 v2, s58, v2")
    a(f"v_and_b32 v3, 7, v{V_LANE}")
    a("s_lshl_b32 s58, s56, 6")
    a("v_add_u32 v4, s58, v2")
    a("v_mul_u32_u24 v5, 896, v4")
    a("v_lshlrev_b32 v6, 4, v3")
    a("s_lshl_b32 s58, s57, 7")
    a("v_add3_u32 v5, v5, v6, s58")
    a("v_mov_b32 v10, 0x80000000")
    for j in (1, 2, 3):
        a(f"v_subrev_u32 v{6+j}, {896*j}, v5")
        a(f"v_cmp_gt_u32 vcc, {j}, v4")
        a("s_nop 1")
        a(f"v_cndmask_b32 v{6+j}, v{6+j}, v10, vcc")
    K0 = [12, 92]
    AKs, AVs = srd(S_AK), srd(S_AV)
    for g in range(2):
        R = K0[g]
        so = 0 if g == 0 else None
        if g == 1:
            a(f"s_movk_i32 s58, {8*896}")
        sof = "0" if g == 0 else "s58"
        if g == 0:
            a(f"buffer_load_dwordx4 v[{R}:{R+3}], v5, {AKs}, 0 offen")
            a(f"buffer_load_dwordx4 v[{R+4}:{R+7}], v7, {AKs}, 0 offen")
            a(f"buffer_load_dwordx4 v[{R+8}:{R+11}], v8, {AKs}, 0 offen")
            a(f"buffer_load_dwordx4 v[{R+12}:{R+15}], v9, {AKs}, 0 offen")
            a(f"buffer_load_dwordx4 v[{R+16}:{R+19}], v5, {AVs}, 0 offen")
        else:
            a(f"v_add_u32 v11, {5*896}, v5")
            a(f"buffer_load_dwordx4 v[{R+12}:{R+15}], v11, {AKs}, 0 offen")
            a(f"buffer_load_dwordx4 v[{R+8}:{R+11}], v11, {AKs}, 0 offen offset:896")
            a(f"buffer_load_dwordx4 v[{R+4}:{R+7}], v11, {AKs}, 0 offen offset:1792")
            a(f"buffer_load_dwordx4 v[{R}:{R+3}], v11, {AKs}, 0 offen offset:2688")
            a(f"buffer_load_dwordx4 v[{R+16}:{R+19}], v11, {AVs}, 0 offen offset:2688")
    a("v_lshlrev_b32 v6, 6, v3")
    a("s_lshl_b32 s58, s57, 9")
    a("v_add_u32 v6, s58, v6")
    for i in range(4):
        a(f"buffer_load_dwordx4 v[{32+4*i}:{35+4*i}], v6, {srd(S_SH)}, 0 offen offset:{16*i}")
    a("s_mov_b32 s88, 0x05040100")
    a("s_mov_b32 s89, 0x07060302")
    a("v_lshrrev_b32 v10, 1, v2")
    a("v_and_b32 v10, 1, v10")
    a("v_lshlrev_b32 v10, 2, v10")
    a("v_xor_b32 v10, v10, v3")
    a("v_lshlrev_b32 v10, 4, v10")
    a("v_lshl_add_u32 v10, v2, 7, v10")
    a(f"v_add_u32 v10, {L1_BOUNCE}, v10")
    a(f"v_bfe_u32 v11, v{V_LANE}, 2, 2")
    a("v_sub_u32 v48, 3, v11")
    a(f"v_lshrrev_b32 v49, 4, v{V_LANE}")
    a("v_lshlrev_b32 v49, 1, v49")
    a(f"v_bfe_u32 v50, v{V_LANE}, 1, 1")
    a("v_add_u32 v49, v49, v50")
    a("v_lshrrev_b32 v50, 1, v48")
    a("v_lshlrev_b32 v50, 2, v50")
    a("v_xor_b32 v49, v49, v50")
    a("v_lshlrev_b32 v49, 4, v49")
    a(f"v_and_b32 v50, 1, v{V_LANE}")
    a("v_lshl_add_u32 v49, v50, 3, v49")
    a("v_lshl_add_u32 v49, v48, 7, v49")
    a(f"s_lshl_b32 s58, s{S_WAVE}, 11")
    a(f"s_add_u32 s58, s58, {L1_BOUNCE}")
    a("v_add_u32 v49, s58, v49")
    a("s_waitcnt vmcnt(0)")
    stamp(a, 1)
    for g in range(2):
        R = K0[g]
        for e in range(8):
            sel = "s88" if e % 2 == 0 else "s89"
            r = e // 2
            a(f"v_perm_b32 v{60+e}, v{R+4+r}, v{R+r}, {sel}")
            a(f"v_perm_b32 v{68+e}, v{R+12+r}, v{R+8+r}, {sel}")
        for e in range(8): a(f"v_dot2_f32_bf16 v{76+e}, v{60+e}, v{32+2*e}, 0")
        for e in range(8): a(f"v_dot2_f32_bf16 v{76+e}, v{68+e}, v{33+2*e}, v{76+e}")
        for e in range(8):
            r = e // 2
            if e % 2 == 0: a(f"v_lshlrev_b32 v{60+e}, 16, v{R+16+r}")
            else: a(f"v_and_b32 v{60+e}, 0xffff0000, v{R+16+r}")
        for e in range(8): a(f"v_mul_f32 v{76+e}, v{76+e}, v{60+e}")
        for r in range(4): a(f"v_cvt_pk_bf16_f32 v{84+r}, v{76+2*r}, v{77+2*r}")
        a(f"ds_write_b128 v10, v[84:87] offset:{1024*g}")
    a("s_waitcnt lgkmcnt(0)")
    for i in range(4):
        a(f"ds_read_b64_tr_b16 v[{60+2*i}:{61+2*i}], v49 offset:{(3-i)*512}")
    a("s_lshl_b32 s58, s57, 6")
    a(f"v_add_u32 v14, s58, v{V_LANE}")
    a("v_lshlrev_b32 v14, 12, v14")
    a("s_lshl_b32 s58, s56, 6")
    a(f"s_lshl_b32 s59, s{S_WAVE}, 4")
    a("s_add_u32 s58, s58, s59")
    a("s_sub_u32 s58, 2032, s58")
    a("s_lshl_b32 s58, s58, 1")
    a(f"s_add_u32 s58, s58, {WS_U}")
    a("s_waitcnt lgkmcnt(0)")
    a(f"buffer_store_dwordx4 v[60:63], v14, {srd(S_WS)}, s58 offen{SC1}")
    a(f"buffer_store_dwordx4 v[64:67], v14, {srd(S_WS)}, s58 offen offset:16{SC1}")
    a.label(Lnp)
    stamp(a, 2)
    a("s_waitcnt lgkmcnt(0)")
    nonce_ready(a)
    ACC = 64; XF = [8, 12]; WF = [16, 28]; VX = 40; VW = 44
    a(f"v_and_b32 v2, 31, v{V_LANE}")
    a(f"v_lshrrev_b32 v3, 5, v{V_LANE}")
    a("v_bfe_u32 v4, v2, 1, 3")
    a(f"s_lshl_b32 s58, s{S_WAVE}, 12")
    a("v_lshlrev_b32 v5, 7, v2")
    a("v_add_u32 v5, s58, v5")
    for ks in range(4):
        a(f"v_add_u32 v6, {2*ks}, v3")
        a("v_xor_b32 v6, v6, v4")
        a(f"v_lshl_add_u32 v{VX+ks}, v6, 4, v5")
    a(f"v_bfe_u32 v6, v{V_LANE}, 2, 2")
    a("v_lshl_add_u32 v6, v3, 3, v6")
    a("v_mul_u32_u24 v6, 192, v6")
    a(f"v_bfe_u32 v7, v{V_LANE}, 4, 1")
    a("v_lshl_add_u32 v6, v7, 5, v6")
    a(f"v_and_b32 v7, 3, v{V_LANE}")
    a("v_lshl_add_u32 v6, v7, 3, v6")
    a(f"v_add_u32 v{VW}, {XB}, v6")
    for i in range(48): a(f"v_mov_b32 v{ACC+i}, 0")
    def reads(ks, buf, so):
        a(f"ds_read_b128 v[{XF[buf]}:{XF[buf]+3}], v{VX+ks} offset:{so}")
        for ft in range(3):
            for jj in range(2):
                r0 = WF[buf] + 4*ft + 2*jj
                a(f"ds_read_b64_tr_b16 v[{r0}:{r0+1}], v{VW} offset:{so + ks*3072 + jj*768 + 56*ft}")
    VX2 = 45; VW2 = 49
    for k_ in range(4): a(f"v_add_u32 v{VX2+k_}, {2*SLOT}, v{VX+k_}")
    a(f"v_add_u32 v{VW2}, {2*SLOT}, v{VW}")
    for c in range(7):
        sl = c % NSLOT
        if c == 1: a("s_waitcnt vmcnt(0)")
        a("s_barrier")
        if c == 0: stamp(a, 3)
        if c == 1:
            Ls = lab("sigA")
            a("s_cmp_ge_u32 s2, 224")
            a(f"s_cbranch_scc1 {Ls}")
            signal(a, FL_A, "s2")
            a.label(Ls)
        if c == 6: stamp(a, 4)
        def rd_(ks, buf):
            if sl < 2:
                reads(ks, buf, sl*SLOT)
            else:
                a(f"ds_read_b128 v[{XF[buf]}:{XF[buf]+3}], v{VX2+ks}")
                for ft in range(3):
                    for jj in range(2):
                        r0 = WF[buf] + 4*ft + 2*jj
                        a(f"ds_read_b64_tr_b16 v[{r0}:{r0+1}], v{VW2} offset:{ks*3072 + jj*768 + 56*ft}")
        rd_(0, 0)
        for ks in range(4):
            buf = ks & 1
            if ks < 3:
                rd_(ks+1, buf ^ 1)
                a("s_waitcnt lgkmcnt(7)")
            else:
                a("s_waitcnt lgkmcnt(0)")
            for ft in range(3):
                w0 = WF[buf] + 4*ft
                a(f"v_mfma_f32_32x32x16_bf16 v[{ACC+16*ft}:{ACC+16*ft+15}], v[{w0}:{w0+3}], v[{XF[buf]}:{XF[buf]+3}], v[{ACC+16*ft}:{ACC+16*ft+15}]")
    a("s_nop 15")
    stamp(a, 5)
    a("s_lshl_b32 s58, s54, 2")
    a(f"s_add_u32 s58, s58, s{S_WAVE}")
    a(f"v_cmp_lt_u32 s[90:91], 31, v{V_LANE}")
    a(f"v_lshlrev_b32 v2, 4, v{V_LANE}")
    a(f"s_lshl_b32 s59, s{S_WAVE}, 11")
    a(f"s_add_u32 s59, s59, {L1_BOUNCE}")
    a(f"v_and_b32 v3, 31, v{V_LANE}")
    a("v_lshlrev_b32 v3, 6, v3")
    a(f"v_lshrrev_b32 v4, 5, v{V_LANE}")
    a("v_lshl_add_u32 v3, v4, 3, v3")
    a("v_add_u32 v3, s59, v3")
    a(f"v_bfe_u32 v5, v{V_LANE}, 2, 2")
    a("v_lshl_add_u32 v5, v4, 2, v5")
    a("v_lshlrev_b32 v5, 6, v5")
    a(f"v_bfe_u32 v6, v{V_LANE}, 4, 1")
    a("v_lshl_add_u32 v5, v6, 5, v5")
    a(f"v_and_b32 v6, 3, v{V_LANE}")
    a("v_lshl_add_u32 v5, v6, 3, v5")
    a("v_add_u32 v5, s59, v5")
    for ft in range(3):
        A0 = ACC + 16*ft; P = 8
        Lv = lab("vt"); Ld = lab("vd")
        a("s_mul_i32 s60, s55, 3")
        a(f"s_add_u32 s60, s60, {ft}")
        a("s_lshr_b32 s61, s60, 4")
        a("s_and_b32 s62, s60, 15")
        a("s_cmp_eq_u32 s61, 0")
        a(f"s_cselect_b32 s88, {f32hex(QSCALE)}, 1.0")
        for i in range(16): a(f"v_mul_f32 v{A0+i}, s88, v{A0+i}")
        for i in range(8): a(f"v_cvt_pk_bf16_f32 v{P+i}, v{A0+2*i}, v{A0+2*i+1}")
        a("s_cmp_eq_u32 s61, 2")
        a("s_cselect_b32 s88, 0x3f80, 0")
        a("v_mov_b32 v16, s88")
        a("v_mov_b32 v17, 0")
        a(f"v_cndmask_b32 v{P+6}, v{P+6}, v16, s[90:91]")
        a(f"v_cndmask_b32 v{P+7}, v{P+7}, v17, s[90:91]")
        a(f"s_cbranch_scc1 {Lv}")
        a("s_cmp_eq_u32 s61, 0")
        a("s_cselect_b32 s88, 11, 12")
        a(f"s_cselect_b32 s89, {WS_Q}, {WS_KV}")
        a("s_lshl_b32 s92, s62, 6")
        a("s_add_u32 s92, s92, s58")
        a("s_lshl_b32 s92, s92, s88")
        a("s_add_u32 s92, s92, s89")
        a(f"buffer_store_dwordx4 v[{P}:{P+3}], v2, {srd(S_WS)}, s92 offen{SC1}")
        a(f"buffer_store_dwordx4 v[{P+4}:{P+7}], v2, {srd(S_WS)}, s92 offen offset:1024{SC1}")
        a(f"s_branch {Ld}")
        a.label(Lv)
        for blk in range(4): a(f"ds_write_b64 v3, v[{P+2*blk}:{P+2*blk+1}] offset:{16*blk}")
        a("s_waitcnt lgkmcnt(0)")
        for t in range(2):
            for jj in range(2):
                a(f"ds_read_b64_tr_b16 v[{20+4*t+2*jj}:{21+4*t+2*jj}], v5 offset:{(16*t+8*jj)*64}")
        a("s_lshl_b32 s92, s62, 6")
        a("s_add_u32 s92, s92, s58")
        a("s_lshl_b32 s92, s92, 12")
        a(f"s_add_u32 s92, s92, {WS_KV + 2048}")
        a("s_waitcnt lgkmcnt(0)")
        a(f"buffer_store_dwordx4 v[20:23], v2, {srd(S_WS)}, s92 offen{SC1}")
        a(f"buffer_store_dwordx4 v[24:27], v2, {srd(S_WS)}, s92 offen offset:1024{SC1}")
        a.label(Ld)
        a("s_nop 1")
    a.label(Ldone)
    a("s_waitcnt vmcnt(0) lgkmcnt(0)")
    nonce_ready(a)
    a("s_barrier")
    a("s_lshl_b32 s58, s55, 4")
    a("s_add_u32 s58, s58, s54")
    signal(a, FL_B, "s58")
    stamp(a, 6)

def attn_map(a):
    a("s_and_b32 s52, s2, 7")
    a("s_lshr_b32 s53, s2, 3")
    a("s_and_b32 s54, s53, 1")
    a("s_lshl_b32 s52, s52, 1")
    a("s_add_u32 s52, s52, s54")
    a("s_lshr_b32 s53, s53, 1")

def poll_B_addr(a, v):
    a("s_add_u32 s88, s52, 16")
    a("s_mul_i32 s88, s88, 21846")
    a("s_lshr_b32 s88, s88, 16")
    a("s_add_u32 s89, s52, 32")
    a("s_mul_i32 s89, s89, 21846")
    a("s_lshr_b32 s89, s89, 16")
    a("s_mul_i32 s90, s52, 21846")
    a("s_lshr_b32 s90, s90, 16")
    a("s_lshl_b32 s90, s90, 4")
    a("s_add_u32 s90, s90, s53")
    a("s_lshl_b32 s88, s88, 4")
    a("s_lshl_b32 s89, s89, 4")
    a(f"v_and_b32 v{v}, 15, v{V_LANE}")
    a(f"v_add_u32 v246, s88, v{v}")
    a(f"v_add_u32 v247, s89, v{v}")
    a(f"v_cmp_lt_u32 vcc, 15, v{V_LANE}")
    a(f"v_mov_b32 v248, s90")
    a("s_nop 0")
    a(f"v_cndmask_b32 v{v}, v246, v247, vcc")
    a(f"v_cmp_lt_u32 vcc, 31, v{V_LANE}")
    a("s_nop 1")
    a(f"v_cndmask_b32 v{v}, v{v}, v248, vcc")
    a(f"v_lshlrev_b32 v{v}, 4, v{v}")
    a(f"v_add_u32 v{v}, {FL_B}, v{v}")

def conv_phase(a):
    Lskip = lab("noconv"); Lh = lab("cvh"); Lj1 = lab("cvj1"); Lj2 = lab("cvj2"); Lend = lab("cvend")
    attn_map(a)
    a("s_cmp_ge_u32 s2, 224")
    a(f"s_cbranch_scc1 {Lskip}")
    L1 = lab("pa")
    a(f"s_cmp_lg_u32 s{S_WAVE}, 4")
    a(f"s_cbranch_scc1 {L1}")
    a("s_lshr_b32 s88, s2, 5")
    a(f"v_and_b32 v2, 31, v{V_LANE}")
    a("v_mul_u32_u24 v2, 7, v2")
    a("v_add_u32 v2, s88, v2")
    a("v_lshlrev_b32 v2, 4, v2")
    a(f"v_add_u32 v2, {FL_A}, v2")
    poll(a, 2)
    a.label(L1)
    a("s_barrier")
    stamp(a, 7)
    a(f"s_lshr_b32 s54, s{S_WAVE}, 2")
    a(f"s_and_b32 s55, s{S_WAVE}, 3")
    a("s_lshl_b32 s56, s2, 1")
    a("s_add_u32 s56, s56, s54")
    a(f"s_mul_i32 s60, s54, {U_PITCH}")
    a("s_lshl_b32 s61, s55, 10")
    a("s_add_u32 s60, s60, s61")
    a(f"s_add_u32 m0, s60, {LC_U}")
    a("s_lshl_b32 s62, s56, 12")
    a("s_add_u32 s62, s62, s61")
    a(f"s_add_u32 s62, s62, {WS_U}")
    a(f"v_lshlrev_b32 v2, 4, v{V_LANE}")
    a(f"buffer_load_dwordx4 v2, {srd(S_WS)}, s62 offen{SC1} lds")
    Lp = lab("nopad")
    a("s_cmp_eq_u32 s55, 0")
    a(f"s_cbranch_scc0 {Lp}")
    a(f"v_and_b32 v2, 31, v{V_LANE}")
    a("v_lshlrev_b32 v2, 4, v2")
    a(f"s_mul_i32 s60, s54, {U_PITCH}")
    a(f"s_add_u32 s60, s60, {LC_U + 4096}")
    a("v_add_u32 v2, s60, v2")
    for j in range(4): a(f"v_mov_b32 v{8+j}, 0")
    a("ds_write_b128 v2, v[8:11]")
    a.label(Lp)
    a("s_waitcnt vmcnt(0) lgkmcnt(0)")
    a("s_barrier")
    a(f"s_cmp_ge_u32 s{S_WAVE}, 4")
    a(f"s_cbranch_scc1 {Lh}")
    a(f"s_lshr_b32 s54, s{S_WAVE}, 1")
    a(f"s_and_b32 s55, s{S_WAVE}, 1")
    a("s_lshl_b32 s56, s2, 1")
    a("s_add_u32 s56, s56, s54")
    a("s_lshl_b32 s57, s2, 2")
    a(f"s_load_dword s60, s[{S_SD}:{S_SD+1}], s57")
    VA, VB = 2, 3
    a(f"v_lshrrev_b32 v4, 4, v{V_LANE}")
    a(f"v_bfe_u32 v5, v{V_LANE}, 2, 2")
    a(f"v_and_b32 v6, 3, v{V_LANE}")
    a(f"v_mul_u32_u24 v5, {HC_PITCH}, v5")
    a("v_lshl_add_u32 v5, v4, 4, v5")
    a("v_lshl_add_u32 v5, v6, 3, v5")
    a(f"s_mul_i32 s61, s54, {HC_CH}")
    a("s_lshl_b32 s62, s55, 8")
    a("s_add_u32 s61, s61, s62")
    a(f"s_add_u32 s61, s61, {LC_HC}")
    a(f"v_add_u32 v{VA}, s61, v5")
    a(f"v_and_b32 v6, 15, v{V_LANE}")
    a("v_lshlrev_b32 v7, 5, v6")
    a("v_lshlrev_b32 v5, 4, v4")
    a("v_sub_u32 v5, v5, v7")
    a(f"s_mul_i32 s61, s54, {U_PITCH}")
    a(f"s_add_u32 s61, s61, {LC_U + 480}")
    a("s_add_u32 s61, s61, s62")
    a(f"v_add_u32 v{VB}, s61, v5")
    ACC = 32; AB = [64, 128]
    for i in range(32): a(f"v_mov_b32 v{ACC+i}, 0")
    def rd_list(k, buf):
        L = []
        for t in range(8):
            for jj in range(2):
                r0 = AB[buf] + 4*t + 2*jj
                L.append(f"ds_read_b64_tr_b16 v[{r0}:{r0+1}], v{VA} offset:{64*(8*t + k) + 8*jj}")
            r0 = AB[buf] + 32 + 4*t
            L.append(f"ds_read_b128 v[{r0}:{r0+3}], v{VB} offset:{64*(-8*t + k + 56)}")
        return L
    for i, ins in enumerate(rd_list(0, 0)):
        a(ins)
        if i == 11: a("s_waitcnt lgkmcnt(3)")
    for k in range(4):
        buf = k & 1
        a("s_waitcnt lgkmcnt(0)")
        nxt = rd_list(k+1, buf ^ 1) if k < 3 else []
        mf = []
        for t in range(8):
            for n in range(t, 8):
                A_ = AB[buf] + 4*t; B_ = AB[buf] + 32 + 4*(n - t)
                mf.append(f"v_mfma_f32_16x16x32_bf16 v[{ACC+4*n}:{ACC+4*n+3}], v[{A_}:{A_+3}], v[{B_}:{B_+3}], v[{ACC+4*n}:{ACC+4*n+3}]")
        ni = 0
        for i, m in enumerate(mf):
            a(m)
            if i % 3 != 2 and ni < len(nxt):
                a(nxt[ni]); ni += 1
        while ni < len(nxt):
            a(nxt[ni]); ni += 1
    a("s_nop 7")
    stamp(a, 8)
    a(f"v_lshlrev_b32 v4, 4, v{V_LANE}")
    a(f"s_lshl_b32 s61, s{S_WAVE}, 12")
    a(f"s_add_u32 s61, s61, {LC_RED}")
    a("v_add_u32 v5, s61, v4")
    a(f"s_xor_b32 s62, s{S_WAVE}, 1")
    a("s_lshl_b32 s62, s62, 12")
    a(f"s_add_u32 s62, s62, {LC_RED}")
    a("v_add_u32 v6, s62, v4")
    Lg1 = lab("g1"); Lg2 = lab("g2")
    a("s_cmp_eq_u32 s55, 0")
    a(f"s_cbranch_scc0 {Lg1}")
    for i in range(4): a(f"ds_write_b128 v5, v[{ACC+16+4*i}:{ACC+16+4*i+3}] offset:{1024*i}")
    a(f"s_branch {Lg2}")
    a.label(Lg1)
    for i in range(4): a(f"ds_write_b128 v5, v[{ACC+4*i}:{ACC+4*i+3}] offset:{1024*i}")
    a("s_waitcnt lgkmcnt(0)")
    for i in range(16): a(f"v_mov_b32 v{ACC+i}, v{ACC+16+i}")
    a.label(Lg2)
    a("s_waitcnt lgkmcnt(0)")
    a("s_barrier")
    for i in range(4): a(f"ds_read_b128 v[{64+4*i}:{64+4*i+3}], v6 offset:{1024*i}")
    a(f"v_and_b32 v7, 15, v{V_LANE}")
    a(f"v_lshrrev_b32 v8, 4, v{V_LANE}")
    a("v_lshlrev_b32 v9, 5, v7")
    a("v_lshl_add_u32 v9, v8, 3, v9")
    a(f"s_mul_i32 s61, s54, {U_PITCH}")
    a(f"s_add_u32 s61, s61, {LC_U + 4088 - 3*512}")
    a("s_lshl_b32 s62, s55, 11")
    a("s_sub_u32 s61, s61, s62")
    a("v_sub_u32 v10, s61, v9")
    for i in range(4): a(f"ds_read_b64 v[{80+2*i}:{81+2*i}], v10 offset:{(3-i)*512}")
    a("s_waitcnt lgkmcnt(0)")
    a("s_cmp_eq_u32 s54, 0")
    a("s_cselect_b32 s61, 16, 0")
    a("s_lshl_b32 s60, s60, s61")
    a("s_and_b32 s60, s60, 0xffff0000")
    a("s_lshl_b32 s61, s56, 12")
    a("s_lshl_b32 s62, s55, 11")
    a("s_add_u32 s61, s61, s62")
    a(f"s_add_u32 s61, s61, {WS_Z}")
    for i in range(4):
        Y = ACC + 4*i; Pp = 64 + 4*i; U0 = 80 + 2*i
        for r in range(4): a(f"v_add_f32 v{Y+r}, v{Y+r}, v{Pp+r}")
        a(f"v_and_b32 v12, 0xffff0000, v{U0+1}")
        a(f"v_lshlrev_b32 v13, 16, v{U0+1}")
        a(f"v_and_b32 v14, 0xffff0000, v{U0}")
        a(f"v_lshlrev_b32 v15, 16, v{U0}")
        for r in range(4): a(f"v_fma_f32 v{Y+r}, v{12+r}, s60, v{Y+r}")
        a(f"v_cvt_pk_bf16_f32 v{16+2*i}, v{Y}, v{Y+1}")
        a(f"v_cvt_pk_bf16_f32 v{17+2*i}, v{Y+2}, v{Y+3}")
        a(f"buffer_store_dwordx2 v[{16+2*i}:{17+2*i}], v9, {srd(S_WS)}, s61 offen offset:{512*i}{SC1}")
    a(f"s_branch {Lj2}")
    a.label(Lh)
    kv_prefetch(a, first=True)
    a("s_barrier")
    a(f"s_branch {Lj2}")
    a.label(Lskip)
    Lw = lab("skipw")
    a(f"s_cmp_lt_u32 s{S_WAVE}, 4")
    a(f"s_cbranch_scc1 {Lj2}")
    kv_prefetch(a, first=False)
    a.label(Lj2)
    a("s_waitcnt vmcnt(0) lgkmcnt(0)")
    a("s_barrier")
    Ls = lab("sigC")
    a("s_cmp_ge_u32 s2, 224")
    a(f"s_cbranch_scc1 {Ls}")
    signal(a, FL_C, "s2")
    a.label(Ls)
    stamp(a, 9)

def kv_prefetch(a, first):
    poll_B_addr(a, 2)
    poll(a, 2)
    a(f"s_sub_u32 s88, s{S_WAVE}, 4")
    a(f"v_lshlrev_b32 v4, 4, v{V_LANE}")
    a("s_lshl_b32 s89, s52, 18")
    a("s_lshl_b32 s90, s88, 12")
    a("s_add_u32 s89, s89, s90")
    a(f"s_add_u32 s89, s89, {WS_KV}")
    for stg in range(2):
        for kh in range(2):
            a(f"s_add_u32 m0, s90, {stg*32768 + kh*16384}")
            a(f"s_add_u32 s91, s89, {kh*131072 + stg*16384}")
            for n in range(4):
                a(f"buffer_load_dwordx4 v4, {srd(S_WS)}, s91 offen offset:{n*1024}{SC1} lds")

def attention(a):
    a(f"s_and_b32 s54, s{S_WAVE}, 3")
    a(f"s_lshr_b32 s55, s{S_WAVE}, 2")
    QF, CI, S0, S1, P, KF, VF, O = 8, 16, 32, 48, 64, 72, 80, 88
    VC, VN, VL16 = 2, 3, 4
    VWO = 104
    a(f"v_lshlrev_b32 v{VL16}, 4, v{V_LANE}")
    a("s_lshl_b32 s56, s52, 6")
    a("s_lshl_b32 s57, s53, 2")
    a("s_add_u32 s56, s56, s57")
    a("s_add_u32 s56, s56, s54")
    a("s_lshl_b32 s56, s56, 11")
    a(f"s_add_u32 s56, s56, {WS_Q}")
    a(f"buffer_load_dwordx4 v[{QF}:{QF+3}], v{VL16}, {srd(S_WS)}, s56 offen{SC1}")
    a(f"buffer_load_dwordx4 v[{QF+4}:{QF+7}], v{VL16}, {srd(S_WS)}, s56 offen offset:1024{SC1}")
    a("s_lshl_b32 s57, s52, 18")
    a("s_lshl_b32 s58, s55, 5")
    a("s_add_u32 s58, s58, s54")
    a("s_lshl_b32 s58, s58, 12")
    a("s_add_u32 s57, s57, s58")
    a(f"s_add_u32 s57, s57, {WS_KV + 2*16384}")
    a(f"s_lshl_b32 s58, s{S_WAVE}, 12")
    a("s_lshr_b32 s88, s2, 3")
    a("s_mul_i32 s89, s88, 9363")
    a("s_lshr_b32 s89, s89, 16")
    a("s_mul_i32 s89, s89, 7")
    a("s_sub_u32 s89, s88, s89")
    a(f"v_and_b32 v5, 7, v{V_LANE}")
    a(f"v_bfe_u32 v6, v{V_LANE}, 4, 1")
    a("v_lshlrev_b32 v6, 2, v6")
    a("v_xor_b32 v5, v5, v6")
    a("v_lshlrev_b32 v5, 4, v5")
    a(f"v_lshrrev_b32 v6, 3, v{V_LANE}")
    a("v_mul_u32_u24 v6, 896, v6")
    a(f"v_add_u32 v{VWO}, v5, v6")
    a(f"s_mul_i32 s62, s{S_WAVE}, {8*896}")
    a("s_lshl_b32 s89, s89, 7")
    a("s_add_u32 s62, s62, s89")
    a(f"s_lshl_b32 s56, s{S_WAVE}, 10")
    a(f"s_add_u32 s56, s56, {L3_WO}")
    for i in range(16):
        a(f"v_mov_b32 v{CI+i}, 0")
        a(f"v_mov_b32 v{O+i}, 0")
    a("s_lshl_b32 s59, s55, 14")
    a(f"v_add_u32 v{VC}, s59, v{VL16}")
    a(f"v_add_u32 v{VN}, 32768, v{VC}")
    a("s_mov_b32 s60, 65536")
    a("s_mov_b32 s61, 0")
    def rd(dst, base, off): a(f"ds_read_b128 v[{dst}:{dst+3}], v{base} offset:{off}")
    def qk1(Sx): a(f"v_mfma_f32_32x32x16_bf16 v[{Sx}:{Sx+15}], v[{KF}:{KF+3}], v[{QF}:{QF+3}], v[{CI}:{CI+15}]")
    def qk2(Sx): a(f"v_mfma_f32_32x32x16_bf16 v[{Sx}:{Sx+15}], v[{KF+4}:{KF+7}], v[{QF+4}:{QF+7}], v[{Sx}:{Sx+15}]")
    def pv(h_): a(f"v_mfma_f32_32x32x16_bf16 v[{O}:{O+15}], v[{VF+4*h_}:{VF+4*h_+3}], v[{P+4*h_}:{P+4*h_+3}], v[{O}:{O+15}]")
    def ex(Sc, lo, hi):
        for e in range(lo, hi): a(f"v_exp_f32 v{Sc+e}, v{Sc+e}")
    def cv(Sc, lo, hi):
        for e in range(lo, hi): a(f"v_cvt_pk_bf16_f32 v{P+e}, v{Sc+2*e}, v{Sc+2*e+1}")
    rd(KF, VC, 0); rd(KF+4, VC, 1024)
    for e in range(4, 8): a(f"v_mov_b32 v{P+e}, 0")
    a("s_waitcnt vmcnt(0) lgkmcnt(0)")
    qk1(S0); qk2(S0)
    rd(KF, VC, 4096)
    rd(VF+4, VC, 2048+1024)
    rd(KF+4, VC, 4096+1024)
    rd(VF, VC, 2048)
    a("s_nop 7")
    stamp(a, 10)
    Lloop = lab("atloop")
    a.raw(".p2align 6")
    a.label(Lloop)
    for i in range(4):
        Sc = S0 if i % 2 == 0 else S1
        Sn = S1 if i % 2 == 0 else S0
        if i == 2:
            a("s_waitcnt vmcnt(0)")
            a("s_barrier")
            a("s_add_u32 m0, s58, s60")
            a("s_nop 0")
        def kvp(n): a(f"buffer_load_dwordx4 v{VL16}, {srd(S_WS)}, s57 offen offset:{n*1024}{SC1} lds")
        kb, kt = (VC, i+2) if i < 2 else (VN, i-2)
        vb, vt = (VC, i+1) if i < 3 else (VN, 0)
        a(f"s_setprio {[1,0,3,2][i]}")
        a("s_waitcnt lgkmcnt(2)")
        qk1(Sn)
        rd(KF, kb, kt*4096)
        if i >= 2: kvp(2*(i-2))
        ex(Sc, 0, 4)
        pv(1)
        rd(VF+4, VC, i*4096 + 2048 + 1024)
        ex(Sc, 4, 6)
        cv(Sc, 0, 2)
        ex(Sc, 6, 7)
        a("s_waitcnt lgkmcnt(2)")
        qk2(Sn)
        rd(KF+4, kb, kt*4096 + 1024)
        if i >= 2: kvp(2*(i-2) + 1)
        ex(Sc, 7, 9)
        cv(Sc, 2, 3)
        ex(Sc, 9, 11)
        cv(Sc, 3, 4)
        ex(Sc, 11, 13)
        pv(0)
        rd(VF, vb, vt*4096 + 2048)
        ex(Sc, 13, 16)
        if i == 3:
            Lw = lab("nowo")
            a(f"s_cmp_eq_u32 s{S_WAVE}, 0")
            a("s_cselect_b32 s88, 8, 7")
            a("s_cmp_ge_u32 s2, 224")
            a("s_cselect_b32 s88, 0, s88")
            a("s_cmp_ge_u32 s61, s88")
            a(f"s_cbranch_scc1 {Lw}")
            a("s_mov_b32 m0, s56")
            a("s_add_u32 s56, s56, 8192")
            a(f"buffer_load_dwordx4 v{VWO}, {srd(S_WO)}, s62 offen lds")
            a(f"s_add_u32 s62, s62, {64*896}")
            a.label(Lw)
        cv(Sc, 4, 8)
    a("s_add_u32 s57, s57, 16384")
    a("s_cmp_ge_u32 s61, 5")
    a("s_cselect_b32 s57, 0x7f000000, s57")
    a("s_add_u32 s60, s60, 32768")
    a("s_cmp_eq_u32 s60, 98304")
    a("s_cselect_b32 s60, 0, s60")
    a(f"v_mov_b32 v{VC}, v{VN}")
    a(f"v_add_u32 v{VN}, 32768, v{VN}")
    a(f"s_add_u32 s88, s59, {98304}")
    a(f"v_add_u32 v5, s88, v{VL16}")
    a(f"v_cmp_eq_u32 vcc, v{VN}, v5")
    a(f"v_add_u32 v6, s59, v{VL16}")
    a("s_add_u32 s61, s61, 1")
    a(f"v_cndmask_b32 v{VN}, v{VN}, v6, vcc")
    a("s_cmp_lt_u32 s61, 8")
    a(f"s_cbranch_scc1 {Lloop}")
    a("s_setprio 0")
    a("s_waitcnt vmcnt(0) lgkmcnt(0)")
    pv(1)
    a("s_barrier")
    a("s_nop 15")
    a("s_lshl_b32 s62, s54, 12")
    a(f"s_add_u32 s62, s62, {LA_COMB}")
    a(f"v_add_u32 v5, s62, v{VL16}")
    Lc0 = lab("c0"); Lend = lab("atend")
    a("s_cmp_eq_u32 s55, 0")
    a(f"s_cbranch_scc1 {Lc0}")
    for g in range(4): a(f"ds_write_b128 v5, v[{O+4*g}:{O+4*g+3}] offset:{1024*g}")
    a("s_waitcnt lgkmcnt(0)")
    a.label(Lc0)
    a("s_barrier")
    a("s_cmp_eq_u32 s55, 0")
    a(f"s_cbranch_scc0 {Lend}")
    for g in range(4): a(f"ds_read_b128 v[{S0+4*g}:{S0+4*g+3}], v5 offset:{1024*g}")
    a("s_waitcnt lgkmcnt(0)")
    for i in range(16): a(f"v_add_f32 v{O+i}, v{O+i}, v{S0+i}")
    a(f"v_mov_b32 v6, v{O+12}")
    a(f"v_mov_b32 v7, v{O+12}")
    a("s_nop 1")
    a("v_permlane32_swap_b32 v6, v7")
    a("s_nop 1")
    a("v_rcp_f32 v7, v7")
    a("s_nop 0")
    for i in range(16): a(f"v_mul_f32 v{O+i}, v{O+i}, v7")
    for i in range(8): a(f"v_cvt_pk_bf16_f32 v{P+i}, v{O+2*i}, v{O+2*i+1}")
    a(f"v_cmp_lt_u32 vcc, 31, v{V_LANE}")
    a("v_mov_b32 v6, 0")
    a("s_nop 0")
    a(f"v_cndmask_b32 v{P+6}, v{P+6}, v6, vcc")
    a(f"v_cndmask_b32 v{P+7}, v{P+7}, v6, vcc")
    a("s_lshl_b32 s62, s53, 2")
    a("s_add_u32 s62, s62, s54")
    a("s_lshl_b32 s62, s62, 4")
    a("s_add_u32 s62, s62, s52")
    a("s_lshl_b32 s62, s62, 11")
    a(f"s_add_u32 s62, s62, {WS_O}")
    a(f"buffer_store_dwordx4 v[{P}:{P+3}], v{VL16}, {srd(S_WS)}, s62 offen{SC1}")
    a(f"buffer_store_dwordx4 v[{P+4}:{P+7}], v{VL16}, {srd(S_WS)}, s62 offen offset:1024{SC1}")
    a.label(Lend)
    a("s_waitcnt vmcnt(0) lgkmcnt(0)")
    a("s_barrier")
    a("s_lshl_b32 s58, s53, 4")
    a("s_add_u32 s58, s58, s52")
    signal(a, FL_D, "s58")

def phase3(a):
    Lend = lab("p3end"); Lpost = lab("post")
    a("s_cmp_ge_u32 s2, 224")
    a(f"s_cbranch_scc1 {Lend}")
    a("s_and_b32 s52, s2, 7")
    a("s_lshr_b32 s53, s2, 3")
    a("s_mul_i32 s54, s53, 9363")
    a("s_lshr_b32 s54, s54, 16")
    a("s_mul_i32 s55, s54, 7")
    a("s_sub_u32 s55, s53, s55")
    a("s_lshl_b32 s52, s52, 2")
    a("s_add_u32 s54, s54, s52")
    a(f"s_cmp_ge_u32 s{S_WAVE}, 4")
    a(f"s_cbranch_scc1 {Lpost}")
    a("s_barrier")
    a("s_lshr_b32 s56, s54, 1")
    a("s_lshl_b32 s56, s56, 4")
    a(f"v_and_b32 v2, 15, v{V_LANE}")
    a("v_add_u32 v2, s56, v2")
    a("v_lshlrev_b32 v2, 4, v2")
    a(f"v_add_u32 v2, {FL_D}, v2")
    poll(a, 2)
    a(f"v_lshlrev_b32 v5, 4, v{V_LANE}")
    a("s_lshl_b32 s57, s54, 16")
    a(f"s_lshl_b32 s58, s{S_WAVE}, 14")
    a("s_add_u32 s57, s57, s58")
    a(f"s_add_u32 s57, s57, {WS_O}")
    for q in range(4):
        a(f"s_add_u32 m0, s58, {L3_O + q*4096}")
        a(f"s_add_u32 s59, s57, {q*4096}")
        for n in range(4): a(f"buffer_load_dwordx4 v5, {srd(S_WS)}, s59 offen offset:{1024*n}{SC1} lds")
    a(f"s_and_b32 s56, s{S_WAVE}, 1")
    a(f"s_lshr_b32 s57, s{S_WAVE}, 1")
    VO, VW = 8, 9
    a("s_lshl_b32 s58, s56, 15")
    a(f"s_add_u32 s58, s58, {L3_O}")
    a(f"v_lshlrev_b32 v{VO}, 4, v{V_LANE}")
    a(f"v_add_u32 v{VO}, s58, v{VO}")
    a(f"v_lshrrev_b32 v10, 5, v{V_LANE}")
    a(f"v_bfe_u32 v11, v{V_LANE}, 2, 2")
    a("v_lshl_add_u32 v10, v10, 2, v11")
    a("v_lshlrev_b32 v10, 7, v10")
    a(f"v_bfe_u32 v12, v{V_LANE}, 4, 1")
    a(f"v_bfe_u32 v13, v{V_LANE}, 1, 1")
    a("v_lshl_add_u32 v12, v12, 1, v13")
    a("s_lshl_b32 s58, s57, 2")
    a("v_add_u32 v12, s58, v12")
    a("v_lshrrev_b32 v11, 1, v11")
    a("v_lshlrev_b32 v11, 2, v11")
    a("v_xor_b32 v12, v12, v11")
    a("v_lshl_add_u32 v10, v12, 4, v10")
    a(f"v_and_b32 v13, 1, v{V_LANE}")
    a(f"v_lshl_add_u32 v{VW}, v13, 3, v10")
    a(f"v_add_u32 v{VW}, {L3_WO}, v{VW}")
    ACC = 16; NB = 4; OB = 32; WB = 48
    for i in range(16): a(f"v_mov_b32 v{ACC+i}, 0")
    def rd(k):
        h, t = k // 2, k % 2
        b = k % NB
        a(f"ds_read_b128 v[{OB+4*b}:{OB+4*b+3}], v{VO} offset:{h*2048 + t*1024}")
        for jj in range(2):
            a(f"ds_read_b64_tr_b16 v[{WB+4*b+2*jj}:{WB+4*b+2*jj+1}], v{VW} offset:{(28*h + 16*t + 8*jj)*128}")
    a("s_waitcnt vmcnt(0)")
    a("s_barrier")
    for k in range(NB-1): rd(k)
    for k in range(32):
        if k + NB - 1 < 32:
            rd(k + NB - 1)
            a(f"s_waitcnt lgkmcnt({3*(NB-1)})")
        else:
            a(f"s_waitcnt lgkmcnt({3*(31-k)})")
        b = k % NB
        a(f"v_mfma_f32_32x32x16_bf16 v[{ACC}:{ACC+15}], v[{WB+4*b}:{WB+4*b+3}], v[{OB+4*b}:{OB+4*b+3}], v[{ACC}:{ACC+15}]")
    a("s_nop 15")
    P = 32
    for i in range(8): a(f"v_cvt_pk_bf16_f32 v{P+i}, v{ACC+2*i}, v{ACC+2*i+1}")
    a(f"v_and_b32 v10, 31, v{V_LANE}")
    a("s_lshl_b32 s58, s54, 6")
    a("s_lshl_b32 s59, s56, 5")
    a("s_add_u32 s58, s58, s59")
    a("v_add_u32 v10, s58, v10")
    a("v_mul_u32_u24 v10, 1792, v10")
    a(f"v_lshrrev_b32 v11, 5, v{V_LANE}")
    a("v_lshl_add_u32 v10, v11, 4, v10")
    a("s_lshl_b32 s58, s55, 7")
    a("s_lshl_b32 s59, s57, 6")
    a("s_add_u32 s58, s58, s59")
    a("s_add_u32 s58, s58, 896")
    a(f"v_permlane32_swap_b32 v{P}, v{P+2}")
    a(f"v_permlane32_swap_b32 v{P+1}, v{P+3}")
    a(f"v_permlane32_swap_b32 v{P+4}, v{P+6}")
    a(f"v_permlane32_swap_b32 v{P+5}, v{P+7}")
    a("s_nop 1")
    a(f"buffer_store_dwordx4 v[{P}:{P+3}], v10, {srd(S_OUT)}, s58 offen")
    a(f"buffer_store_dwordx4 v[{P+4}:{P+7}], v10, {srd(S_OUT)}, s58 offen offset:32")
    a(f"s_branch {Lend}")
    a.label(Lpost)
    a(f"s_sub_u32 s56, s{S_WAVE}, 4")
    a("s_lshl_b32 s57, s55, 5")
    a(f"v_and_b32 v2, 31, v{V_LANE}")
    a("v_add_u32 v2, s57, v2")
    a("v_lshlrev_b32 v2, 4, v2")
    a(f"v_add_u32 v2, {FL_C}, v2")
    a(f"v_lshrrev_b32 v10, 3, v{V_LANE}")
    a("s_lshl_b32 s58, s54, 6")
    a("s_lshl_b32 s59, s56, 4")
    a("s_add_u32 s58, s58, s59")
    a("v_add_u32 v10, s58, v10")
    a(f"v_and_b32 v11, 7, v{V_LANE}")
    a("v_lshlrev_b32 v11, 4, v11")
    a("s_lshl_b32 s58, s55, 7")
    a("v_add_u32 v11, s58, v11")
    a("v_mul_u32_u24 v12, 896, v10")
    a("v_add_u32 v12, v12, v11")
    a(f"buffer_load_dwordx4 v[16:19], v12, {srd(S_AQ)}, 0 offen")
    a(f"v_add_u32 v12, {8*896}, v12")
    a(f"buffer_load_dwordx4 v[20:23], v12, {srd(S_AQ)}, 0 offen")
    a("v_mul_u32_u24 v13, 1792, v10")
    a("v_add_u32 v13, v13, v11")
    poll(a, 2)
    a(f"v_and_b32 v3, 7, v{V_LANE}")
    a(f"v_bfe_u32 v4, v{V_LANE}, 4, 1")
    a("v_lshlrev_b32 v4, 2, v4")
    a("v_xor_b32 v3, v3, v4")
    a("v_lshlrev_b32 v3, 4, v3")
    a(f"v_lshrrev_b32 v4, 3, v{V_LANE}")
    a("v_lshl_add_u32 v6, v4, 12, v3")
    a("s_lshl_b32 s57, s55, 6")
    a("s_lshl_b32 s58, s56, 4")
    a("s_add_u32 s57, s57, s58")
    a("s_lshl_b32 s57, s57, 12")
    a("s_lshl_b32 s58, s54, 7")
    a("s_add_u32 s57, s57, s58")
    a(f"s_add_u32 s57, s57, {WS_Z}")
    a("s_lshl_b32 s58, s56, 11")
    a(f"s_add_u32 m0, s58, {L3_Z}")
    a("s_nop 0")
    a(f"buffer_load_dwordx4 v6, {srd(S_WS)}, s57 offen{SC1} lds")
    a(f"s_add_u32 m0, s58, {L3_Z + 1024}")
    a(f"s_add_u32 s57, s57, {8*4096}")
    a(f"buffer_load_dwordx4 v6, {srd(S_WS)}, s57 offen{SC1} lds")
    a(f"v_lshrrev_b32 v14, 4, v{V_LANE}")
    a(f"v_bfe_u32 v15, v{V_LANE}, 2, 2")
    a("v_lshl_add_u32 v14, v14, 3, v15")
    a("v_lshlrev_b32 v14, 7, v14")
    a(f"v_bfe_u32 v24, v{V_LANE}, 1, 1")
    a("s_lshl_b32 s58, s56, 1")
    a("v_add_u32 v24, s58, v24")
    a("v_lshrrev_b32 v15, 1, v15")
    a("v_lshlrev_b32 v15, 2, v15")
    a("v_xor_b32 v24, v24, v15")
    a("v_lshl_add_u32 v14, v24, 4, v14")
    a(f"v_and_b32 v24, 1, v{V_LANE}")
    a("v_lshl_add_u32 v14, v24, 3, v14")
    a(f"v_add_u32 v14, {L3_Z}, v14")
    a(f"v_and_b32 v24, 15, v{V_LANE}")
    a(f"v_lshrrev_b32 v25, 4, v{V_LANE}")
    a("v_and_b32 v26, 7, v24")
    a("v_xor_b32 v25, v25, v26")
    a("v_xor_b32 v26, 4, v25")
    a("s_lshl_b32 s58, s56, 11")
    a(f"s_add_u32 s58, s58, {L3_B}")
    a("v_lshlrev_b32 v24, 7, v24")
    a("v_add_u32 v24, s58, v24")
    a("v_lshl_add_u32 v25, v25, 4, v24")
    a("v_lshl_add_u32 v26, v26, 4, v24")
    a(f"v_lshrrev_b32 v27, 3, v{V_LANE}")
    a(f"v_and_b32 v28, 7, v{V_LANE}")
    a("v_xor_b32 v28, v28, v27")
    a("v_lshlrev_b32 v28, 4, v28")
    a("v_lshl_add_u32 v28, v27, 7, v28")
    a("v_add_u32 v28, s58, v28")
    a("s_waitcnt vmcnt(0)")
    a("s_barrier")
    for u in range(2):
        for jj in range(2):
            a(f"ds_read_b64_tr_b16 v[{32+4*u+2*jj}:{33+4*u+2*jj}], v14 offset:{(32*u + 4*jj)*128}")
    a("s_waitcnt lgkmcnt(0)")
    a("ds_write_b128 v25, v[32:35]")
    a("ds_write_b128 v26, v[36:39]")
    a("s_waitcnt lgkmcnt(0)")
    a("ds_read_b128 v[40:43], v28")
    a("ds_read_b128 v[44:47], v28 offset:1024")
    a("s_waitcnt lgkmcnt(0)")
    for n in range(2):
        Z, Q = 40 + 4*n, 16 + 4*n
        for r in range(4):
            a(f"v_lshlrev_b32 v48, 16, v{Z+r}")
            a(f"v_and_b32 v49, 0xffff0000, v{Z+r}")
            a(f"v_lshlrev_b32 v50, 16, v{Q+r}")
            a(f"v_and_b32 v51, 0xffff0000, v{Q+r}")
            a("v_mul_f32 v48, v48, v50")
            a("v_mul_f32 v49, v49, v51")
            a(f"v_cvt_pk_bf16_f32 v{52+4*n+r}, v48, v49")
    a(f"buffer_store_dwordx4 v[52:55], v13, {srd(S_OUT)}, 0 offen")
    a(f"v_add_u32 v13, {8*1792}, v13")
    a(f"buffer_store_dwordx4 v[56:59], v13, {srd(S_OUT)}, 0 offen")
    a("s_barrier")
    a.label(Lend)

def finale(a):
    L = lab("fin")
    a("s_cmp_lg_u32 s2, 255")
    a(f"s_cbranch_scc1 {L}")
    a(f"s_cmp_lg_u32 s{S_WAVE}, 0")
    a(f"s_cbranch_scc1 {L}")
    for q in range(4):
        a(f"v_lshlrev_b32 v2, 4, v{V_LANE}")
        a(f"v_add_u32 v2, {FL_B + q*1024}, v2")
        poll(a, 2)
    a(f"s_add_u32 s94, s{S_NRAW}, 1")
    a("v_mov_b32 v250, s94")
    a(f"v_mov_b32 v251, {FL_N}")
    a("s_mov_b64 exec, 1")
    a(f"buffer_store_dword v250, v251, {srd(S_WS)}, 0 offen sc1")
    a("s_mov_b64 exec, -1")
    a.label(L)

def kernel_text(name):
    a = Asm()
    G.uid = 0
    ex = "L_exit"
    prologue(a, ex)
    stamp_begin(a)
    stamp(a, 0)
    phase1(a)
    conv_phase(a)
    attention(a)
    phase3(a)
    finale(a)
    if STAMP_ON:
        a("s_waitcnt vmcnt(0)")
        stamp_flush(a)
    a.label(ex)
    a("s_endpgm")
    return a.text()
```

```python
import sys, os
sys.path.insert(0, "gen"); sys.path.insert(0, "mb")
import pk
from asmlib import *
from build import build
NAME = "concat_heads__ssm_conv_h3__softmax_full_mha__prompt"
mode = sys.argv[1] if len(sys.argv) > 1 else "dev"
pk.STAMP_ON = (mode in ("dev", "rt"))
pk.STAMP_RT = (mode == "rt")
kname = NAME + "_kernel"
HDR = open(f"cdna_kernels/{NAME}.s.ref").read().split("; Override launch geometry")[0]
out = HDR + f"; @launch grid=(256,1,1) block=(512,1,1) lds={pk.LDS_SIZE}\n"
out += '.amdgcn_target "amdgcn-amd-amdhsa--gfx950"\n.text\n'
out += kernel_head(kname) + pk.kernel_text(kname)
out += '.section .rodata,"a"\n' + kernel_desc(kname, 256)
if mode == "dev":
    dst = "pk_dev%s.s" % os.environ.get("SFX", "")
    open(dst, "w").write(out)
    build(dst, dst.replace(".s", ".co"), kname)
else:
    dst = sys.argv[2] if len(sys.argv) > 2 else f"cdna_kernels/{NAME}.s"
    open(dst, "w").write(out)
    build(dst, "pk_final.co", kname)
print("built", dst, len(out))
```

```python
import os, struct
from asmlib import *
S = 2048; D = 448; H = 16; DH = 28
WS_Q  = 0x000000; WS_KV = 0x200000; WS_U  = 0x600000; WS_Z  = 0x800000; WS_O  = 0xA00000
WS_STAMP = 0xC00000
WS_FLAG = 0xD00000
FL_A, FL_B, FL_C, FL_D, FL_N = [WS_FLAG + 0x1000*i for i in range(5)]
WS_SIZE = 0xE00000
S_WS, S_X, S_WQKV, S_AK, S_AV, S_SH, S_AQ, S_SK, S_SD, S_WO, S_OUT, S_DBG = [4 + 4*i for i in range(12)]
SRD_INFO = [(S_AQ, 0, 1835008), (S_AK, 8, 1835008), (S_AV, 16, 1835008), (S_SH, 24, 3584),
    (S_SK, 32, 1835008), (S_SD, 40, 896), (S_X, 48, 1835008), (S_WQKV, 56, 1204224),
    (S_WO, 64, 401408), (S_OUT, 72, 3670016), (S_DBG, 80, 256), (S_WS, 88, WS_SIZE)]
S_WAVE = 3; V_LANE = 1; S_NONCE = 93; S_NRAW = 63
SC1 = " sc1"
QSCALE = float(28 ** -0.5 * 1.4426950408889634)
def f32hex(x): return "0x%08x" % struct.unpack("<I", struct.pack("<f", x))[0]
def srd(b): return f"s[{b}:{b+3}]"
SLOT = 28672; XB = 16384; NSLOT = 3
L1_BOUNCE = NSLOT * SLOT
RING = 0
LC_RED = 65536
HC_PITCH = 4160; HC_CH = 4 * HC_PITCH
LC_HC = 98304
LC_U = LC_HC + 2 * HC_CH
U_PITCH = 4608
LC_END = LC_U + 2 * U_PITCH
L3_WO = 98304
LA_COMB = 0
L3_O = 0; L3_Z = 65536; L3_B = L3_Z + 8192
LDS_SIZE = L3_WO + 57 * 1024

STAMP_ON = False
STAMP_RT = False
NSTAMP = 11
SPIN_MAX = 1 << 16
class G:
    uid = 0
def lab(p):
    G.uid += 1
    return f"L_{p}_{G.uid}"
def stamp(a, idx):
    if not STAMP_ON: return
    a(f"{'s_memrealtime' if STAMP_RT else 's_memtime'} s[{64+2*idx}:{65+2*idx}]")
def stamp_begin(a):
    if not STAMP_ON: return
    for i in range(64, 88): a(f"s_mov_b32 s{i}, 0")
    a("s_memrealtime s[86:87]")
    a("s_waitcnt lgkmcnt(0)")
def stamp_flush(a):
    if not STAMP_ON: return
    if STAMP_RT:
        a("s_memrealtime s[96:97]")
        a("s_waitcnt lgkmcnt(0)")
        a("s_not_b32 s86, s86")
        for i in range(NSTAMP): a(f"v_mov_b32 v{8+i}, s{64+2*i}")
        a("v_mov_b32 v19, s86")
        a("v_mov_b32 v20, s96")
        a("s_mov_b64 exec, 1")
        for i in range(13):
            a(f"v_mov_b32 v2, {4*i}")
            a(f"buffer_atomic_umax v{8+i}, v2, {srd(S_DBG)}, 0 offen sc1") if False else a(f"buffer_atomic_umax v{8+i}, v2, {srd(S_DBG)}, 0 offen")
        a("s_mov_b64 exec, -1")
        return
    a("s_memrealtime s[96:97]")
    a("s_waitcnt lgkmcnt(0)")
    a("s_lshl_b32 s98, s2, 3")
    a(f"s_add_u32 s98, s98, s{S_WAVE}")
    a("s_lshl_b32 s98, s98, 6")
    a(f"s_add_u32 s98, s98, {WS_STAMP}")
    for i in range(NSTAMP): a(f"v_mov_b32 v{8+i}, s{64+2*i}")
    a(f"v_mov_b32 v{8+11}, s86")
    a(f"v_mov_b32 v{8+12}, s96")
    a("v_mov_b32 v2, 0")
    a("s_mov_b64 exec, 1")
    for g in range(3): a(f"buffer_store_dwordx4 v[{8+4*g}:{11+4*g}], v2, {srd(S_WS)}, s98 offen offset:{16*g}")
    a(f"buffer_store_dword v20, v2, {srd(S_WS)}, s98 offen offset:48")
    a("s_mov_b64 exec, -1")

def prologue(a, exit_label):
    a(f"s_cmp_ge_u32 s2, 256")
    a(f"s_cbranch_scc1 {exit_label}")
    a("s_load_dwordx16 s[64:79], s[0:1], 0")
    a("s_load_dwordx8 s[80:87], s[0:1], 64")
    a("v_lshrrev_b32 v2, 6, v0")
    a(f"v_and_b32 v{V_LANE}, 63, v0")
    a(f"v_readfirstlane_b32 s{S_WAVE}, v2")
    for (b, off, nb) in SRD_INFO:
        a(f"s_mov_b32 s{b+2}, {nb}")
        a(f"s_mov_b32 s{b+3}, 0x00020000")
    a("s_waitcnt lgkmcnt(0)")
    for (b, off, nb) in SRD_INFO:
        a(f"s_mov_b32 s{b}, s{64 + off//4}")
        a(f"s_mov_b32 s{b+1}, s{64 + off//4 + 1}")
    a(f"s_add_u32 s52, s{S_WS}, {FL_N}")
    a(f"s_addc_u32 s53, s{S_WS+1}, 0")
    a(f"s_load_dword s{S_NRAW}, s[52:53], 0")

def nonce_ready(a):
    a(f"s_mul_i32 s{S_NONCE}, s{S_NRAW}, 0x9E3779B1")
    a(f"s_add_u32 s{S_NONCE}, s{S_NONCE}, 0x7F4A7C15")

def signal(a, base, idx_sreg):
    L = lab("sig")
    a(f"s_cmp_lg_u32 s{S_WAVE}, 0")
    a(f"s_cbranch_scc1 {L}")
    a(f"s_lshl_b32 s94, {idx_sreg}, 4")
    a(f"s_add_u32 s94, s94, {base}")
    a(f"v_mov_b32 v250, s{S_NONCE}")
    a("v_mov_b32 v251, 0")
    a("s_mov_b64 exec, 1")
    a(f"buffer_store_dword v250, v251, {srd(S_WS)}, s94 offen sc1")
    a("s_mov_b64 exec, -1")
    a.label(L)

def poll(a, vaddr):
    L = lab("poll"); E = lab("pollx")
    a("s_mov_b32 s94, 0")
    a.label(L)
    a(f"buffer_load_dword v249, v{vaddr}, {srd(S_WS)}, 0 offen sc1")
    a("s_add_u32 s94, s94, 1")
    a(f"s_cmp_gt_u32 s94, {SPIN_MAX}")
    a("s_waitcnt vmcnt(0)")
    a(f"s_cbranch_scc1 {E}")
    a(f"v_cmp_ne_u32 vcc, s{S_NONCE}, v249")
    a(f"s_cbranch_vccnz {L}")
    a.label(E)

def phase1(a):
    a("s_and_b32 s52, s2, 7")
    a("s_lshr_b32 s53, s2, 3")
    a("s_lshr_b32 s54, s52, 1")
    a("s_lshl_b32 s54, s54, 2")
    a("s_and_b32 s55, s53, 3")
    a("s_add_u32 s54, s54, s55")
    a("s_and_b32 s55, s52, 1")
    a("s_lshl_b32 s55, s55, 3")
    a("s_lshr_b32 s56, s53, 2")
    a("s_add_u32 s55, s55, s56")
    Lg = lab("gemmw"); Ldone = lab("p1done")
    a(f"s_cmp_lt_u32 s{S_WAVE}, 4")
    a(f"s_cbranch_scc1 {Lg}")
    a(f"s_sub_u32 s58, s{S_WAVE}, 4")
    a(f"v_lshrrev_b32 v50, 3, v{V_LANE}")
    a("s_movk_i32 s59, 896")
    a("v_mul_lo_u32 v50, v50, s59")
    a(f"v_and_b32 v51, 7, v{V_LANE}")
    a(f"v_lshrrev_b32 v52, 4, v{V_LANE}")
    a("v_xor_b32 v51, v51, v52")
    a("v_xor_b32 v52, 4, v51")
    a("v_lshl_add_u32 v51, v51, 4, v50")
    a("v_lshl_add_u32 v52, v52, 4, v50")
    for m in range(3):
        a(f"v_add_u32 v53, {64*m}, v{V_LANE}")
        a("v_mul_u32_u24 v54, 5462, v53")
        a("v_lshrrev_b32 v54, 16, v54")
        a("v_mul_u32_u24 v55, 12, v54")
        a("v_sub_u32 v55, v53, v55")
        a("v_mul_u32_u24 v54, 2688, v54")
        a(f"v_lshl_add_u32 v{56+m}, v55, 4, v54")
    a("s_lshr_b32 s88, s53, 2")
    a("s_and_b32 s89, s53, 3")
    a("s_lshl_b32 s89, s89, 1")
    a("s_add_u32 s88, s88, s89")
    a("s_cmp_ge_u32 s88, 7")
    a("s_cselect_b32 s89, 7, 0")
    a("s_sub_u32 s88, s88, s89")
    a("s_lshl_b32 s60, s54, 7")
    a("s_lshl_b32 s61, s58, 5")
    a("s_add_u32 s60, s60, s61")
    a("s_mul_i32 s60, s60, 896")
    a("s_mul_i32 s61, s58, 43008")
    a("s_mul_i32 s62, s55, 168")
    a("s_add_u32 s61, s61, s62")
    a("s_lshl_b32 s62, s58, 12")
    a("s_mul_i32 s59, s58, 3072")
    def dma_chunk(k):
        slot = (k % NSLOT) * SLOT
        a("s_lshl_b32 s90, s88, 7")
        a("s_add_u32 s90, s90, s60")
        a(f"s_mul_i32 s91, s88, {64*2688}")
        a("s_add_u32 s91, s91, s61")
        for n in range(4):
            a(f"s_add_u32 m0, s62, {slot + n*1024}")
            a(f"s_add_u32 s92, s90, {n*8*896}")
            a(f"buffer_load_dwordx4 v{51 + (n & 1)}, {srd(S_X)}, s92 offen lds")
        for m in range(3):
            a(f"s_add_u32 m0, s59, {slot + XB + m*1024}")
            a("s_nop 0")
            a(f"buffer_load_dwordx4 v{56+m}, {srd(S_WQKV)}, s91 offen lds")
        a("s_add_u32 s88, s88, 1")
        a("s_cmp_eq_u32 s88, 7")
        a("s_cselect_b32 s88, 0, s88")
    for k in range(3): dma_chunk(k)
    stamp(a, 1)
    NH = 6
    def h_loads():
        Ls = lab("noh")
        a("s_lshl_b32 s90, s2, 1")
        a("s_cmp_ge_u32 s2, 224")
        a("s_cselect_b32 s90, 0, s90")
        a("s_lshl_b32 s90, s90, 12")
        a("s_lshl_b32 s91, s58, 6")
        a(f"v_add_u32 v2, s91, v{V_LANE}")
        a("v_lshlrev_b32 v3, 4, v2")
        a("v_subrev_u32 v4, 16, v3")
        a("v_cmp_eq_u32 vcc, 0, v2")
        a("v_mov_b32 v5, 0x80000000")
        a("s_nop 0")
        a("v_cndmask_b32 v4, v4, v5, vcc")
        a(f"v_cmp_eq_u32 vcc, 0, v{V_LANE}")
        a("v_mov_b32 v6, 4080")
        a("s_nop 0")
        a("v_cndmask_b32 v6, v5, v6, vcc")
        for ch in range(2):
            a(f"s_add_u32 s44, s{S_SK}, s90") if False else None
        for ch in range(2):
            a(f"s_add_u32 s{HS[ch]}, s{S_SK}, s90")
            a(f"s_addc_u32 s{HS[ch]+1}, s{S_SK+1}, 0")
            a(f"s_movk_i32 s{HS[ch]+2}, 4096")
            a(f"s_mov_b32 s{HS[ch]+3}, 0x00020000")
            a("s_add_u32 s90, s90, 4096")
            D0 = 8 + 12*ch
            a(f"buffer_load_dwordx4 v[{D0}:{D0+3}], v4, {srd(HS[ch])}, 0 offen")
            a(f"buffer_load_dwordx4 v[{D0+4}:{D0+7}], v3, {srd(HS[ch])}, 0 offen")
            a(f"buffer_load_dwordx4 v[{D0+8}:{D0+11}], v6, {srd(HS[ch])}, 0 offen")
    HS = [S_AK, S_AV]
    waits = [14, 7, 7, 7, 7, 7 + NH, NH]
    for k in range(7):
        a(f"s_waitcnt vmcnt({waits[k]})")
        a("s_barrier")
        if 1 <= k <= 4: dma_chunk(k + 2)
        if k == 4: h_loads()
    a("s_waitcnt vmcnt(0)")
    Lnh = lab("nohb")
    a("s_cmp_ge_u32 s2, 224")
    a(f"s_cbranch_scc1 {Lnh}")
    a(f"v_cmp_eq_u32 vcc, 0, v{V_LANE}")
    a("v_mov_b32 v7, 4112")
    a("v_add_u32 v3, 16, v3")
    a("v_cndmask_b32 v7, 0, v7, vcc")
    def emit(Dr, dst, base):
        for j in range(4): a(f"v_alignbit_b32 v{36+j}, v{Dr+j+1}, v{Dr+j}, 16")
        for j in range(4): a(f"v_alignbit_b32 v{40+j}, v{Dr+j+2}, v{Dr+j+1}, 16")
        for j in range(4): a(f"v_mov_b32 v{44+j}, v{Dr+j+1}")
        a(f"ds_write_b128 v{dst}, v[36:39] offset:{base}")
        a(f"ds_write_b128 v{dst}, v[44:47] offset:{base+HC_PITCH}")
        a(f"ds_write_b128 v{dst}, v[40:43] offset:{base+2*HC_PITCH}")
        a(f"ds_write_b128 v{dst}, v[{Dr+2}:{Dr+5}] offset:{base+3*HC_PITCH}")
        a("s_waitcnt lgkmcnt(0)")
    a(f"v_add_u32 v3, {LC_HC}, v3")
    a(f"v_add_u32 v7, {LC_HC}, v7")
    for ch in range(2):
        emit(8 + 12*ch, 3, ch*HC_CH)
    Lnt = lab("notail")
    a("s_cmp_eq_u32 s58, 3")
    a(f"s_cbranch_scc0 {Lnt}")
    for ch in range(2):
        D0 = 8 + 12*ch + 8
        for j in range(4): a(f"v_mov_b32 v{60+j}, v{D0+j}")
        for j in range(4): a(f"v_mov_b32 v{64+j}, 0")
        emit(60, 7, ch*HC_CH)
    a.label(Lnt)
    a.label(Lnh)
    a(f"s_branch {Ldone}")
    a.label(Lg)
    Lnp = lab("nopre")
    a("s_mul_i32 s56, s2, 9363")
    a("s_lshr_b32 s56, s56, 16")
    a("s_mul_i32 s57, s56, 7")
    a("s_sub_u32 s57, s2, s57")
    a("s_cmp_ge_u32 s2, 224")
    a(f"s_cbranch_scc1 {Lnp}")
    a(f"v_lshrrev_b32 v2, 3, v{V_LANE}")
    a(f"s_lshl_b32 s58, s{S_WAVE}, 4")
    a("v_add_u32 v2, s58, v2")
    a(f"v_and_b32 v3, 7, v{V_LANE}")
    a("s_lshl_b32 s58, s56, 6")
    a("v_add_u32 v4, s58, v2")
    a("v_mul_u32_u24 v5, 896, v4")
    a("v_lshlrev_b32 v6, 4, v3")
    a("s_lshl_b32 s58, s57, 7")
    a("v_add3_u32 v5, v5, v6, s58")
    a("v_mov_b32 v10, 0x80000000")
    for j in (1, 2, 3):
        a(f"v_subrev_u32 v{6+j}, {896*j}, v5")
        a(f"v_cmp_gt_u32 vcc, {j}, v4")
        a("s_nop 1")
        a(f"v_cndmask_b32 v{6+j}, v{6+j}, v10, vcc")
    K0 = [12, 92]
    AKs, AVs = srd(S_AK), srd(S_AV)
    for g in range(2):
        R = K0[g]
        so = 0 if g == 0 else None
        if g == 1:
            a(f"s_movk_i32 s58, {8*896}")
        sof = "0" if g == 0 else "s58"
        if g == 0:
            a(f"buffer_load_dwordx4 v[{R}:{R+3}], v5, {AKs}, 0 offen")
            a(f"buffer_load_dwordx4 v[{R+4}:{R+7}], v7, {AKs}, 0 offen")
            a(f"buffer_load_dwordx4 v[{R+8}:{R+11}], v8, {AKs}, 0 offen")
            a(f"buffer_load_dwordx4 v[{R+12}:{R+15}], v9, {AKs}, 0 offen")
            a(f"buffer_load_dwordx4 v[{R+16}:{R+19}], v5, {AVs}, 0 offen")
        else:
            a(f"v_add_u32 v11, {5*896}, v5")
            a(f"buffer_load_dwordx4 v[{R+12}:{R+15}], v11, {AKs}, 0 offen")
            a(f"buffer_load_dwordx4 v[{R+8}:{R+11}], v11, {AKs}, 0 offen offset:896")
            a(f"buffer_load_dwordx4 v[{R+4}:{R+7}], v11, {AKs}, 0 offen offset:1792")
            a(f"buffer_load_dwordx4 v[{R}:{R+3}], v11, {AKs}, 0 offen offset:2688")
            a(f"buffer_load_dwordx4 v[{R+16}:{R+19}], v11, {AVs}, 0 offen offset:2688")
    a("v_lshlrev_b32 v6, 6, v3")
    a("s_lshl_b32 s58, s57, 9")
    a("v_add_u32 v6, s58, v6")
    for i in range(4):
        a(f"buffer_load_dwordx4 v[{32+4*i}:{35+4*i}], v6, {srd(S_SH)}, 0 offen offset:{16*i}")
    a("s_mov_b32 s88, 0x05040100")
    a("s_mov_b32 s89, 0x07060302")
    a("v_lshrrev_b32 v10, 1, v2")
    a("v_and_b32 v10, 1, v10")
    a("v_lshlrev_b32 v10, 2, v10")
    a("v_xor_b32 v10, v10, v3")
    a("v_lshlrev_b32 v10, 4, v10")
    a("v_lshl_add_u32 v10, v2, 7, v10")
    a(f"v_add_u32 v10, {L1_BOUNCE}, v10")
    a(f"v_bfe_u32 v11, v{V_LANE}, 2, 2")
    a("v_sub_u32 v48, 3, v11")
    a(f"v_lshrrev_b32 v49, 4, v{V_LANE}")
    a("v_lshlrev_b32 v49, 1, v49")
    a(f"v_bfe_u32 v50, v{V_LANE}, 1, 1")
    a("v_add_u32 v49, v49, v50")
    a("v_lshrrev_b32 v50, 1, v48")
    a("v_lshlrev_b32 v50, 2, v50")
    a("v_xor_b32 v49, v49, v50")
    a("v_lshlrev_b32 v49, 4, v49")
    a(f"v_and_b32 v50, 1, v{V_LANE}")
    a("v_lshl_add_u32 v49, v50, 3, v49")
    a("v_lshl_add_u32 v49, v48, 7, v49")
    a(f"s_lshl_b32 s58, s{S_WAVE}, 11")
    a(f"s_add_u32 s58, s58, {L1_BOUNCE}")
    a("v_add_u32 v49, s58, v49")
    a("s_waitcnt vmcnt(0)")
    stamp(a, 1)
    for g in range(2):
        R = K0[g]
        for e in range(8):
            sel = "s88" if e % 2 == 0 else "s89"
            r = e // 2
            a(f"v_perm_b32 v{60+e}, v{R+4+r}, v{R+r}, {sel}")
            a(f"v_perm_b32 v{68+e}, v{R+12+r}, v{R+8+r}, {sel}")
        for e in range(8): a(f"v_dot2_f32_bf16 v{76+e}, v{60+e}, v{32+2*e}, 0")
        for e in range(8): a(f"v_dot2_f32_bf16 v{76+e}, v{68+e}, v{33+2*e}, v{76+e}")
        for e in range(8):
            r = e // 2
            if e % 2 == 0: a(f"v_lshlrev_b32 v{60+e}, 16, v{R+16+r}")
            else: a(f"v_and_b32 v{60+e}, 0xffff0000, v{R+16+r}")
        for e in range(8): a(f"v_mul_f32 v{76+e}, v{76+e}, v{60+e}")
        for r in range(4): a(f"v_cvt_pk_bf16_f32 v{84+r}, v{76+2*r}, v{77+2*r}")
        a(f"ds_write_b128 v10, v[84:87] offset:{1024*g}")
    a("s_waitcnt lgkmcnt(0)")
    for i in range(4):
        a(f"ds_read_b64_tr_b16 v[{60+2*i}:{61+2*i}], v49 offset:{(3-i)*512}")
    a("s_lshl_b32 s58, s57, 6")
    a(f"v_add_u32 v14, s58, v{V_LANE}")
    a("v_lshlrev_b32 v14, 12, v14")
    a("s_lshl_b32 s58, s56, 6")
    a(f"s_lshl_b32 s59, s{S_WAVE}, 4")
    a("s_add_u32 s58, s58, s59")
    a("s_sub_u32 s58, 2032, s58")
    a("s_lshl_b32 s58, s58, 1")
    a(f"s_add_u32 s58, s58, {WS_U}")
    a("s_waitcnt lgkmcnt(0)")
    a(f"buffer_store_dwordx4 v[60:63], v14, {srd(S_WS)}, s58 offen{SC1}")
    a(f"buffer_store_dwordx4 v[64:67], v14, {srd(S_WS)}, s58 offen offset:16{SC1}")
    a.label(Lnp)
    stamp(a, 2)
    a("s_waitcnt lgkmcnt(0)")
    nonce_ready(a)
    ACC = 64; XF = [8, 12]; WF = [16, 28]; VX = 40; VW = 44
    a(f"v_and_b32 v2, 31, v{V_LANE}")
    a(f"v_lshrrev_b32 v3, 5, v{V_LANE}")
    a("v_bfe_u32 v4, v2, 1, 3")
    a(f"s_lshl_b32 s58, s{S_WAVE}, 12")
    a("v_lshlrev_b32 v5, 7, v2")
    a("v_add_u32 v5, s58, v5")
    for ks in range(4):
        a(f"v_add_u32 v6, {2*ks}, v3")
        a("v_xor_b32 v6, v6, v4")
        a(f"v_lshl_add_u32 v{VX+ks}, v6, 4, v5")
    a(f"v_bfe_u32 v6, v{V_LANE}, 2, 2")
    a("v_lshl_add_u32 v6, v3, 3, v6")
    a("v_mul_u32_u24 v6, 192, v6")
    a(f"v_bfe_u32 v7, v{V_LANE}, 4, 1")
    a("v_lshl_add_u32 v6, v7, 5, v6")
    a(f"v_and_b32 v7, 3, v{V_LANE}")
    a("v_lshl_add_u32 v6, v7, 3, v6")
    a(f"v_add_u32 v{VW}, {XB}, v6")
    for i in range(48): a(f"v_mov_b32 v{ACC+i}, 0")
    def reads(ks, buf, so):
        a(f"ds_read_b128 v[{XF[buf]}:{XF[buf]+3}], v{VX+ks} offset:{so}")
        for ft in range(3):
            for jj in range(2):
                r0 = WF[buf] + 4*ft + 2*jj
                a(f"ds_read_b64_tr_b16 v[{r0}:{r0+1}], v{VW} offset:{so + ks*3072 + jj*768 + 56*ft}")
    VX2 = 45; VW2 = 49
    for k_ in range(4): a(f"v_add_u32 v{VX2+k_}, {2*SLOT}, v{VX+k_}")
    a(f"v_add_u32 v{VW2}, {2*SLOT}, v{VW}")
    for c in range(7):
        sl = c % NSLOT
        if c == 1: a("s_waitcnt vmcnt(0)")
        a("s_barrier")
        if c == 0: stamp(a, 3)
        if c == 1:
            Ls = lab("sigA")
            a("s_cmp_ge_u32 s2, 224")
            a(f"s_cbranch_scc1 {Ls}")
            signal(a, FL_A, "s2")
            a.label(Ls)
        if c == 6: stamp(a, 4)
        def rd_(ks, buf):
            if sl < 2:
                reads(ks, buf, sl*SLOT)
            else:
                a(f"ds_read_b128 v[{XF[buf]}:{XF[buf]+3}], v{VX2+ks}")
                for ft in range(3):
                    for jj in range(2):
                        r0 = WF[buf] + 4*ft + 2*jj
                        a(f"ds_read_b64_tr_b16 v[{r0}:{r0+1}], v{VW2} offset:{ks*3072 + jj*768 + 56*ft}")
        rd_(0, 0)
        for ks in range(4):
            buf = ks & 1
            if ks < 3:
                rd_(ks+1, buf ^ 1)
                a("s_waitcnt lgkmcnt(7)")
            else:
                a("s_waitcnt lgkmcnt(0)")
            for ft in range(3):
                w0 = WF[buf] + 4*ft
                a(f"v_mfma_f32_32x32x16_bf16 v[{ACC+16*ft}:{ACC+16*ft+15}], v[{w0}:{w0+3}], v[{XF[buf]}:{XF[buf]+3}], v[{ACC+16*ft}:{ACC+16*ft+15}]")
    a("s_nop 15")
    stamp(a, 5)
    a("s_lshl_b32 s58, s54, 2")
    a(f"s_add_u32 s58, s58, s{S_WAVE}")
    a(f"v_cmp_lt_u32 s[90:91], 31, v{V_LANE}")
    a(f"v_lshlrev_b32 v2, 4, v{V_LANE}")
    a(f"s_lshl_b32 s59, s{S_WAVE}, 11")
    a(f"s_add_u32 s59, s59, {L1_BOUNCE}")
    a(f"v_and_b32 v3, 31, v{V_LANE}")
    a("v_lshlrev_b32 v3, 6, v3")
    a(f"v_lshrrev_b32 v4, 5, v{V_LANE}")
    a("v_lshl_add_u32 v3, v4, 3, v3")
    a("v_add_u32 v3, s59, v3")
    a(f"v_bfe_u32 v5, v{V_LANE}, 2, 2")
    a("v_lshl_add_u32 v5, v4, 2, v5")
    a("v_lshlrev_b32 v5, 6, v5")
    a(f"v_bfe_u32 v6, v{V_LANE}, 4, 1")
    a("v_lshl_add_u32 v5, v6, 5, v5")
    a(f"v_and_b32 v6, 3, v{V_LANE}")
    a("v_lshl_add_u32 v5, v6, 3, v5")
    a("v_add_u32 v5, s59, v5")
    for ft in range(3):
        A0 = ACC + 16*ft; P = 8
        Lv = lab("vt"); Ld = lab("vd")
        a("s_mul_i32 s60, s55, 3")
        a(f"s_add_u32 s60, s60, {ft}")
        a("s_lshr_b32 s61, s60, 4")
        a("s_and_b32 s62, s60, 15")
        a("s_cmp_eq_u32 s61, 0")
        a(f"s_cselect_b32 s88, {f32hex(QSCALE)}, 1.0")
        for i in range(16): a(f"v_mul_f32 v{A0+i}, s88, v{A0+i}")
        for i in range(8): a(f"v_cvt_pk_bf16_f32 v{P+i}, v{A0+2*i}, v{A0+2*i+1}")
        a("s_cmp_eq_u32 s61, 2")
        a("s_cselect_b32 s88, 0x3f80, 0")
        a("v_mov_b32 v16, s88")
        a("v_mov_b32 v17, 0")
        a(f"v_cndmask_b32 v{P+6}, v{P+6}, v16, s[90:91]")
        a(f"v_cndmask_b32 v{P+7}, v{P+7}, v17, s[90:91]")
        a(f"s_cbranch_scc1 {Lv}")
        a("s_cmp_eq_u32 s61, 0")
        a("s_cselect_b32 s88, 11, 12")
        a(f"s_cselect_b32 s89, {WS_Q}, {WS_KV}")
        a("s_lshl_b32 s92, s62, 6")
        a("s_add_u32 s92, s92, s58")
        a("s_lshl_b32 s92, s92, s88")
        a("s_add_u32 s92, s92, s89")
        a(f"buffer_store_dwordx4 v[{P}:{P+3}], v2, {srd(S_WS)}, s92 offen{SC1}")
        a(f"buffer_store_dwordx4 v[{P+4}:{P+7}], v2, {srd(S_WS)}, s92 offen offset:1024{SC1}")
        a(f"s_branch {Ld}")
        a.label(Lv)
        for blk in range(4): a(f"ds_write_b64 v3, v[{P+2*blk}:{P+2*blk+1}] offset:{16*blk}")
        a("s_waitcnt lgkmcnt(0)")
        for t in range(2):
            for jj in range(2):
                a(f"ds_read_b64_tr_b16 v[{20+4*t+2*jj}:{21+4*t+2*jj}], v5 offset:{(16*t+8*jj)*64}")
        a("s_lshl_b32 s92, s62, 6")
        a("s_add_u32 s92, s92, s58")
        a("s_lshl_b32 s92, s92, 12")
        a(f"s_add_u32 s92, s92, {WS_KV + 2048}")
        a("s_waitcnt lgkmcnt(0)")
        a(f"buffer_store_dwordx4 v[20:23], v2, {srd(S_WS)}, s92 offen{SC1}")
        a(f"buffer_store_dwordx4 v[24:27], v2, {srd(S_WS)}, s92 offen offset:1024{SC1}")
        a.label(Ld)
        a("s_nop 1")
    a.label(Ldone)
    a("s_waitcnt vmcnt(0) lgkmcnt(0)")
    nonce_ready(a)
    a("s_barrier")
    a("s_lshl_b32 s58, s55, 4")
    a("s_add_u32 s58, s58, s54")
    signal(a, FL_B, "s58")
    stamp(a, 6)

def attn_map(a):
    a("s_and_b32 s52, s2, 7")
    a("s_lshr_b32 s53, s2, 3")
    a("s_and_b32 s54, s53, 1")
    a("s_lshl_b32 s52, s52, 1")
    a("s_add_u32 s52, s52, s54")
    a("s_lshr_b32 s53, s53, 1")

def poll_B_addr(a, v):
    a("s_add_u32 s88, s52, 16")
    a("s_mul_i32 s88, s88, 21846")
    a("s_lshr_b32 s88, s88, 16")
    a("s_add_u32 s89, s52, 32")
    a("s_mul_i32 s89, s89, 21846")
    a("s_lshr_b32 s89, s89, 16")
    a("s_mul_i32 s90, s52, 21846")
    a("s_lshr_b32 s90, s90, 16")
    a("s_lshl_b32 s90, s90, 4")
    a("s_add_u32 s90, s90, s53")
    a("s_lshl_b32 s88, s88, 4")
    a("s_lshl_b32 s89, s89, 4")
    a(f"v_and_b32 v{v}, 15, v{V_LANE}")
    a(f"v_add_u32 v246, s88, v{v}")
    a(f"v_add_u32 v247, s89, v{v}")
    a(f"v_cmp_lt_u32 vcc, 15, v{V_LANE}")
    a(f"v_mov_b32 v248, s90")
    a("s_nop 0")
    a(f"v_cndmask_b32 v{v}, v246, v247, vcc")
    a(f"v_cmp_lt_u32 vcc, 31, v{V_LANE}")
    a("s_nop 1")
    a(f"v_cndmask_b32 v{v}, v{v}, v248, vcc")
    a(f"v_lshlrev_b32 v{v}, 4, v{v}")
    a(f"v_add_u32 v{v}, {FL_B}, v{v}")

def conv_phase(a):
    Lskip = lab("noconv"); Lh = lab("cvh"); Lj1 = lab("cvj1"); Lj2 = lab("cvj2"); Lend = lab("cvend")
    attn_map(a)
    a("s_cmp_ge_u32 s2, 224")
    a(f"s_cbranch_scc1 {Lskip}")
    L1 = lab("pa")
    a(f"s_cmp_lg_u32 s{S_WAVE}, 4")
    a(f"s_cbranch_scc1 {L1}")
    a("s_lshr_b32 s88, s2, 5")
    a(f"v_and_b32 v2, 31, v{V_LANE}")
    a("v_mul_u32_u24 v2, 7, v2")
    a("v_add_u32 v2, s88, v2")
    a("v_lshlrev_b32 v2, 4, v2")
    a(f"v_add_u32 v2, {FL_A}, v2")
    poll(a, 2)
    a.label(L1)
    a("s_barrier")
    stamp(a, 7)
    a(f"s_lshr_b32 s54, s{S_WAVE}, 2")
    a(f"s_and_b32 s55, s{S_WAVE}, 3")
    a("s_lshl_b32 s56, s2, 1")
    a("s_add_u32 s56, s56, s54")
    a(f"s_mul_i32 s60, s54, {U_PITCH}")
    a("s_lshl_b32 s61, s55, 10")
    a("s_add_u32 s60, s60, s61")
    a(f"s_add_u32 m0, s60, {LC_U}")
    a("s_lshl_b32 s62, s56, 12")
    a("s_add_u32 s62, s62, s61")
    a(f"s_add_u32 s62, s62, {WS_U}")
    a(f"v_lshlrev_b32 v2, 4, v{V_LANE}")
    a(f"buffer_load_dwordx4 v2, {srd(S_WS)}, s62 offen{SC1} lds")
    Lp = lab("nopad")
    a("s_cmp_eq_u32 s55, 0")
    a(f"s_cbranch_scc0 {Lp}")
    a(f"v_and_b32 v2, 31, v{V_LANE}")
    a("v_lshlrev_b32 v2, 4, v2")
    a(f"s_mul_i32 s60, s54, {U_PITCH}")
    a(f"s_add_u32 s60, s60, {LC_U + 4096}")
    a("v_add_u32 v2, s60, v2")
    for j in range(4): a(f"v_mov_b32 v{8+j}, 0")
    a("ds_write_b128 v2, v[8:11]")
    a.label(Lp)
    a("s_waitcnt vmcnt(0) lgkmcnt(0)")
    a("s_barrier")
    a(f"s_cmp_ge_u32 s{S_WAVE}, 4")
    a(f"s_cbranch_scc1 {Lh}")
    a(f"s_lshr_b32 s54, s{S_WAVE}, 1")
    a(f"s_and_b32 s55, s{S_WAVE}, 1")
    a("s_lshl_b32 s56, s2, 1")
    a("s_add_u32 s56, s56, s54")
    a("s_lshl_b32 s57, s2, 2")
    a(f"s_load_dword s60, s[{S_SD}:{S_SD+1}], s57")
    VA, VB = 2, 3
    a(f"v_lshrrev_b32 v4, 4, v{V_LANE}")
    a(f"v_bfe_u32 v5, v{V_LANE}, 2, 2")
    a(f"v_and_b32 v6, 3, v{V_LANE}")
    a(f"v_mul_u32_u24 v5, {HC_PITCH}, v5")
    a("v_lshl_add_u32 v5, v4, 4, v5")
    a("v_lshl_add_u32 v5, v6, 3, v5")
    a(f"s_mul_i32 s61, s54, {HC_CH}")
    a("s_lshl_b32 s62, s55, 8")
    a("s_add_u32 s61, s61, s62")
    a(f"s_add_u32 s61, s61, {LC_HC}")
    a(f"v_add_u32 v{VA}, s61, v5")
    a(f"v_and_b32 v6, 15, v{V_LANE}")
    a("v_lshlrev_b32 v7, 5, v6")
    a("v_lshlrev_b32 v5, 4, v4")
    a("v_sub_u32 v5, v5, v7")
    a(f"s_mul_i32 s61, s54, {U_PITCH}")
    a(f"s_add_u32 s61, s61, {LC_U + 480}")
    a("s_add_u32 s61, s61, s62")
    a(f"v_add_u32 v{VB}, s61, v5")
    ACC = 32; AB = [64, 128]
    for i in range(32): a(f"v_mov_b32 v{ACC+i}, 0")
    def rd_list(k, buf):
        L = []
        for t in range(8):
            for jj in range(2):
                r0 = AB[buf] + 4*t + 2*jj
                L.append(f"ds_read_b64_tr_b16 v[{r0}:{r0+1}], v{VA} offset:{64*(8*t + k) + 8*jj}")
            r0 = AB[buf] + 32 + 4*t
            L.append(f"ds_read_b128 v[{r0}:{r0+3}], v{VB} offset:{64*(-8*t + k + 56)}")
        return L
    for i, ins in enumerate(rd_list(0, 0)):
        a(ins)
        if i == 11: a("s_waitcnt lgkmcnt(3)")
    for k in range(4):
        buf = k & 1
        a("s_waitcnt lgkmcnt(0)")
        nxt = rd_list(k+1, buf ^ 1) if k < 3 else []
        mf = []
        for t in range(8):
            for n in range(t, 8):
                A_ = AB[buf] + 4*t; B_ = AB[buf] + 32 + 4*(n - t)
                mf.append(f"v_mfma_f32_16x16x32_bf16 v[{ACC+4*n}:{ACC+4*n+3}], v[{A_}:{A_+3}], v[{B_}:{B_+3}], v[{ACC+4*n}:{ACC+4*n+3}]")
        ni = 0
        for i, m in enumerate(mf):
            a(m)
            if i % 3 != 2 and ni < len(nxt):
                a(nxt[ni]); ni += 1
        while ni < len(nxt):
            a(nxt[ni]); ni += 1
    a("s_nop 7")
    stamp(a, 8)
    a(f"v_lshlrev_b32 v4, 4, v{V_LANE}")
    a(f"s_lshl_b32 s61, s{S_WAVE}, 12")
    a(f"s_add_u32 s61, s61, {LC_RED}")
    a("v_add_u32 v5, s61, v4")
    a(f"s_xor_b32 s62, s{S_WAVE}, 1")
    a("s_lshl_b32 s62, s62, 12")
    a(f"s_add_u32 s62, s62, {LC_RED}")
    a("v_add_u32 v6, s62, v4")
    Lg1 = lab("g1"); Lg2 = lab("g2")
    a("s_cmp_eq_u32 s55, 0")
    a(f"s_cbranch_scc0 {Lg1}")
    for i in range(4): a(f"ds_write_b128 v5, v[{ACC+16+4*i}:{ACC+16+4*i+3}] offset:{1024*i}")
    a(f"s_branch {Lg2}")
    a.label(Lg1)
    for i in range(4): a(f"ds_write_b128 v5, v[{ACC+4*i}:{ACC+4*i+3}] offset:{1024*i}")
    a("s_waitcnt lgkmcnt(0)")
    for i in range(16): a(f"v_mov_b32 v{ACC+i}, v{ACC+16+i}")
    a.label(Lg2)
    a("s_waitcnt lgkmcnt(0)")
    a("s_barrier")
    for i in range(4): a(f"ds_read_b128 v[{64+4*i}:{64+4*i+3}], v6 offset:{1024*i}")
    a(f"v_and_b32 v7, 15, v{V_LANE}")
    a(f"v_lshrrev_b32 v8, 4, v{V_LANE}")
    a("v_lshlrev_b32 v9, 5, v7")
    a("v_lshl_add_u32 v9, v8, 3, v9")
    a(f"s_mul_i32 s61, s54, {U_PITCH}")
    a(f"s_add_u32 s61, s61, {LC_U + 4088 - 3*512}")
    a("s_lshl_b32 s62, s55, 11")
    a("s_sub_u32 s61, s61, s62")
    a("v_sub_u32 v10, s61, v9")
    for i in range(4): a(f"ds_read_b64 v[{80+2*i}:{81+2*i}], v10 offset:{(3-i)*512}")
    a("s_waitcnt lgkmcnt(0)")
    a("s_cmp_eq_u32 s54, 0")
    a("s_cselect_b32 s61, 16, 0")
    a("s_lshl_b32 s60, s60, s61")
    a("s_and_b32 s60, s60, 0xffff0000")
    a("s_lshl_b32 s61, s56, 12")
    a("s_lshl_b32 s62, s55, 11")
    a("s_add_u32 s61, s61, s62")
    a(f"s_add_u32 s61, s61, {WS_Z}")
    for i in range(4):
        Y = ACC + 4*i; Pp = 64 + 4*i; U0 = 80 + 2*i
        for r in range(4): a(f"v_add_f32 v{Y+r}, v{Y+r}, v{Pp+r}")
        a(f"v_and_b32 v12, 0xffff0000, v{U0+1}")
        a(f"v_lshlrev_b32 v13, 16, v{U0+1}")
        a(f"v_and_b32 v14, 0xffff0000, v{U0}")
        a(f"v_lshlrev_b32 v15, 16, v{U0}")
        for r in range(4): a(f"v_fma_f32 v{Y+r}, v{12+r}, s60, v{Y+r}")
        a(f"v_cvt_pk_bf16_f32 v{16+2*i}, v{Y}, v{Y+1}")
        a(f"v_cvt_pk_bf16_f32 v{17+2*i}, v{Y+2}, v{Y+3}")
        a(f"buffer_store_dwordx2 v[{16+2*i}:{17+2*i}], v9, {srd(S_WS)}, s61 offen offset:{512*i}{SC1}")
    a(f"s_branch {Lj2}")
    a.label(Lh)
    kv_prefetch(a, first=True)
    a("s_barrier")
    a(f"s_branch {Lj2}")
    a.label(Lskip)
    Lw = lab("skipw")
    a(f"s_cmp_lt_u32 s{S_WAVE}, 4")
    a(f"s_cbranch_scc1 {Lj2}")
    kv_prefetch(a, first=False)
    a.label(Lj2)
    a("s_waitcnt vmcnt(0) lgkmcnt(0)")
    a("s_barrier")
    Ls = lab("sigC")
    a("s_cmp_ge_u32 s2, 224")
    a(f"s_cbranch_scc1 {Ls}")
    signal(a, FL_C, "s2")
    a.label(Ls)
    stamp(a, 9)

def kv_prefetch(a, first):
    poll_B_addr(a, 2)
    poll(a, 2)
    a(f"s_sub_u32 s88, s{S_WAVE}, 4")
    a(f"v_lshlrev_b32 v4, 4, v{V_LANE}")
    a("s_lshl_b32 s89, s52, 18")
    a("s_lshl_b32 s90, s88, 12")
    a("s_add_u32 s89, s89, s90")
    a(f"s_add_u32 s89, s89, {WS_KV}")
    for stg in range(2):
        for kh in range(2):
            a(f"s_add_u32 m0, s90, {stg*32768 + kh*16384}")
            a(f"s_add_u32 s91, s89, {kh*131072 + stg*16384}")
            for n in range(4):
                a(f"buffer_load_dwordx4 v4, {srd(S_WS)}, s91 offen offset:{n*1024}{SC1} lds")

def attention(a):
    a(f"s_and_b32 s54, s{S_WAVE}, 3")
    a(f"s_lshr_b32 s55, s{S_WAVE}, 2")
    QF, CI, S0, S1, P, KF, VF, O = 8, 16, 32, 48, 64, 72, 80, 88
    VC, VN, VL16 = 2, 3, 4
    VWO = 104
    a(f"v_lshlrev_b32 v{VL16}, 4, v{V_LANE}")
    a("s_lshl_b32 s56, s52, 6")
    a("s_lshl_b32 s57, s53, 2")
    a("s_add_u32 s56, s56, s57")
    a("s_add_u32 s56, s56, s54")
    a("s_lshl_b32 s56, s56, 11")
    a(f"s_add_u32 s56, s56, {WS_Q}")
    a(f"buffer_load_dwordx4 v[{QF}:{QF+3}], v{VL16}, {srd(S_WS)}, s56 offen{SC1}")
    a(f"buffer_load_dwordx4 v[{QF+4}:{QF+7}], v{VL16}, {srd(S_WS)}, s56 offen offset:1024{SC1}")
    a("s_lshl_b32 s57, s52, 18")
    a("s_lshl_b32 s58, s55, 5")
    a("s_add_u32 s58, s58, s54")
    a("s_lshl_b32 s58, s58, 12")
    a("s_add_u32 s57, s57, s58")
    a(f"s_add_u32 s57, s57, {WS_KV + 2*16384}")
    a(f"s_lshl_b32 s58, s{S_WAVE}, 12")
    a("s_lshr_b32 s88, s2, 3")
    a("s_mul_i32 s89, s88, 9363")
    a("s_lshr_b32 s89, s89, 16")
    a("s_mul_i32 s89, s89, 7")
    a("s_sub_u32 s89, s88, s89")
    a(f"v_and_b32 v5, 7, v{V_LANE}")
    a(f"v_bfe_u32 v6, v{V_LANE}, 4, 1")
    a("v_lshlrev_b32 v6, 2, v6")
    a("v_xor_b32 v5, v5, v6")
    a("v_lshlrev_b32 v5, 4, v5")
    a(f"v_lshrrev_b32 v6, 3, v{V_LANE}")
    a("v_mul_u32_u24 v6, 896, v6")
    a(f"v_add_u32 v{VWO}, v5, v6")
    a(f"s_mul_i32 s62, s{S_WAVE}, {8*896}")
    a("s_lshl_b32 s89, s89, 7")
    a("s_add_u32 s62, s62, s89")
    a(f"s_lshl_b32 s56, s{S_WAVE}, 10")
    a(f"s_add_u32 s56, s56, {L3_WO}")
    for i in range(16):
        a(f"v_mov_b32 v{CI+i}, 0")
        a(f"v_mov_b32 v{O+i}, 0")
    a("s_lshl_b32 s59, s55, 14")
    a(f"v_add_u32 v{VC}, s59, v{VL16}")
    a(f"v_add_u32 v{VN}, 32768, v{VC}")
    a("s_mov_b32 s60, 65536")
    a("s_mov_b32 s61, 0")
    def rd(dst, base, off): a(f"ds_read_b128 v[{dst}:{dst+3}], v{base} offset:{off}")
    def qk1(Sx): a(f"v_mfma_f32_32x32x16_bf16 v[{Sx}:{Sx+15}], v[{KF}:{KF+3}], v[{QF}:{QF+3}], v[{CI}:{CI+15}]")
    def qk2(Sx): a(f"v_mfma_f32_32x32x16_bf16 v[{Sx}:{Sx+15}], v[{KF+4}:{KF+7}], v[{QF+4}:{QF+7}], v[{Sx}:{Sx+15}]")
    def pv(h_): a(f"v_mfma_f32_32x32x16_bf16 v[{O}:{O+15}], v[{VF+4*h_}:{VF+4*h_+3}], v[{P+4*h_}:{P+4*h_+3}], v[{O}:{O+15}]")
    def ex(Sc, lo, hi):
        for e in range(lo, hi): a(f"v_exp_f32 v{Sc+e}, v{Sc+e}")
    def cv(Sc, lo, hi):
        for e in range(lo, hi): a(f"v_cvt_pk_bf16_f32 v{P+e}, v{Sc+2*e}, v{Sc+2*e+1}")
    rd(KF, VC, 0); rd(KF+4, VC, 1024)
    for e in range(4, 8): a(f"v_mov_b32 v{P+e}, 0")
    a("s_waitcnt vmcnt(0) lgkmcnt(0)")
    qk1(S0); qk2(S0)
    rd(KF, VC, 4096)
    rd(VF+4, VC, 2048+1024)
    rd(KF+4, VC, 4096+1024)
    rd(VF, VC, 2048)
    a("s_nop 7")
    stamp(a, 10)
    Lloop = lab("atloop")
    a.raw(".p2align 6")
    a.label(Lloop)
    for i in range(4):
        Sc = S0 if i % 2 == 0 else S1
        Sn = S1 if i % 2 == 0 else S0
        if i == 2:
            a("s_waitcnt vmcnt(0)")
            a("s_barrier")
            a("s_add_u32 m0, s58, s60")
            a("s_nop 0")
        def kvp(n): a(f"buffer_load_dwordx4 v{VL16}, {srd(S_WS)}, s57 offen offset:{n*1024}{SC1} lds")
        kb, kt = (VC, i+2) if i < 2 else (VN, i-2)
        vb, vt = (VC, i+1) if i < 3 else (VN, 0)
        a(f"s_setprio {[1,0,3,2][i]}")
        a("s_waitcnt lgkmcnt(2)")
        qk1(Sn)
        rd(KF, kb, kt*4096)
        if i >= 2: kvp(2*(i-2))
        ex(Sc, 0, 4)
        pv(1)
        rd(VF+4, VC, i*4096 + 2048 + 1024)
        ex(Sc, 4, 6)
        cv(Sc, 0, 2)
        ex(Sc, 6, 7)
        a("s_waitcnt lgkmcnt(2)")
        qk2(Sn)
        rd(KF+4, kb, kt*4096 + 1024)
        if i >= 2: kvp(2*(i-2) + 1)
        ex(Sc, 7, 9)
        cv(Sc, 2, 3)
        ex(Sc, 9, 11)
        cv(Sc, 3, 4)
        ex(Sc, 11, 13)
        pv(0)
        rd(VF, vb, vt*4096 + 2048)
        ex(Sc, 13, 16)
        if i == 3:
            Lw = lab("nowo")
            a(f"s_cmp_eq_u32 s{S_WAVE}, 0")
            a("s_cselect_b32 s88, 8, 7")
            a("s_cmp_ge_u32 s2, 224")
            a("s_cselect_b32 s88, 0, s88")
            a("s_cmp_ge_u32 s61, s88")
            a(f"s_cbranch_scc1 {Lw}")
            a("s_mov_b32 m0, s56")
            a("s_add_u32 s56, s56, 8192")
            a(f"buffer_load_dwordx4 v{VWO}, {srd(S_WO)}, s62 offen lds")
            a(f"s_add_u32 s62, s62, {64*896}")
            a.label(Lw)
        cv(Sc, 4, 8)
    a("s_add_u32 s57, s57, 16384")
    a("s_cmp_ge_u32 s61, 5")
    a("s_cselect_b32 s57, 0x7f000000, s57")
    a("s_add_u32 s60, s60, 32768")
    a("s_cmp_eq_u32 s60, 98304")
    a("s_cselect_b32 s60, 0, s60")
    a(f"v_mov_b32 v{VC}, v{VN}")
    a(f"v_add_u32 v{VN}, 32768, v{VN}")
    a(f"s_add_u32 s88, s59, {98304}")
    a(f"v_add_u32 v5, s88, v{VL16}")
    a(f"v_cmp_eq_u32 vcc, v{VN}, v5")
    a(f"v_add_u32 v6, s59, v{VL16}")
    a("s_add_u32 s61, s61, 1")
    a(f"v_cndmask_b32 v{VN}, v{VN}, v6, vcc")
    a("s_cmp_lt_u32 s61, 8")
    a(f"s_cbranch_scc1 {Lloop}")
    a("s_setprio 0")
    a("s_waitcnt vmcnt(0) lgkmcnt(0)")
    pv(1)
    a("s_barrier")
    a("s_nop 15")
    a("s_lshl_b32 s62, s54, 12")
    a(f"s_add_u32 s62, s62, {LA_COMB}")
    a(f"v_add_u32 v5, s62, v{VL16}")
    Lc0 = lab("c0"); Lend = lab("atend")
    a("s_cmp_eq_u32 s55, 0")
    a(f"s_cbranch_scc1 {Lc0}")
    for g in range(4): a(f"ds_write_b128 v5, v[{O+4*g}:{O+4*g+3}] offset:{1024*g}")
    a("s_waitcnt lgkmcnt(0)")
    a.label(Lc0)
    a("s_barrier")
    a("s_cmp_eq_u32 s55, 0")
    a(f"s_cbranch_scc0 {Lend}")
    for g in range(4): a(f"ds_read_b128 v[{S0+4*g}:{S0+4*g+3}], v5 offset:{1024*g}")
    a("s_waitcnt lgkmcnt(0)")
    for i in range(16): a(f"v_add_f32 v{O+i}, v{O+i}, v{S0+i}")
    a(f"v_mov_b32 v6, v{O+12}")
    a(f"v_mov_b32 v7, v{O+12}")
    a("s_nop 1")
    a("v_permlane32_swap_b32 v6, v7")
    a("s_nop 1")
    a("v_rcp_f32 v7, v7")
    a("s_nop 0")
    for i in range(16): a(f"v_mul_f32 v{O+i}, v{O+i}, v7")
    for i in range(8): a(f"v_cvt_pk_bf16_f32 v{P+i}, v{O+2*i}, v{O+2*i+1}")
    a(f"v_cmp_lt_u32 vcc, 31, v{V_LANE}")
    a("v_mov_b32 v6, 0")
    a("s_nop 0")
    a(f"v_cndmask_b32 v{P+6}, v{P+6}, v6, vcc")
    a(f"v_cndmask_b32 v{P+7}, v{P+7}, v6, vcc")
    a("s_lshl_b32 s62, s53, 2")
    a("s_add_u32 s62, s62, s54")
    a("s_lshl_b32 s62, s62, 4")
    a("s_add_u32 s62, s62, s52")
    a("s_lshl_b32 s62, s62, 11")
    a(f"s_add_u32 s62, s62, {WS_O}")
    a(f"buffer_store_dwordx4 v[{P}:{P+3}], v{VL16}, {srd(S_WS)}, s62 offen{SC1}")
    a(f"buffer_store_dwordx4 v[{P+4}:{P+7}], v{VL16}, {srd(S_WS)}, s62 offen offset:1024{SC1}")
    a.label(Lend)
    a("s_waitcnt vmcnt(0) lgkmcnt(0)")
    a("s_barrier")
    a("s_lshl_b32 s58, s53, 4")
    a("s_add_u32 s58, s58, s52")
    signal(a, FL_D, "s58")

def phase3(a):
    Lend = lab("p3end"); Lpost = lab("post")
    a("s_cmp_ge_u32 s2, 224")
    a(f"s_cbranch_scc1 {Lend}")
    a("s_and_b32 s52, s2, 7")
    a("s_lshr_b32 s53, s2, 3")
    a("s_mul_i32 s54, s53, 9363")
    a("s_lshr_b32 s54, s54, 16")
    a("s_mul_i32 s55, s54, 7")
    a("s_sub_u32 s55, s53, s55")
    a("s_lshl_b32 s52, s52, 2")
    a("s_add_u32 s54, s54, s52")
    a(f"s_cmp_ge_u32 s{S_WAVE}, 4")
    a(f"s_cbranch_scc1 {Lpost}")
    a("s_barrier")
    a("s_lshr_b32 s56, s54, 1")
    a("s_lshl_b32 s56, s56, 4")
    a(f"v_and_b32 v2, 15, v{V_LANE}")
    a("v_add_u32 v2, s56, v2")
    a("v_lshlrev_b32 v2, 4, v2")
    a(f"v_add_u32 v2, {FL_D}, v2")
    poll(a, 2)
    a(f"v_lshlrev_b32 v5, 4, v{V_LANE}")
    a("s_lshl_b32 s57, s54, 16")
    a(f"s_lshl_b32 s58, s{S_WAVE}, 14")
    a("s_add_u32 s57, s57, s58")
    a(f"s_add_u32 s57, s57, {WS_O}")
    for q in range(4):
        a(f"s_add_u32 m0, s58, {L3_O + q*4096}")
        a(f"s_add_u32 s59, s57, {q*4096}")
        for n in range(4): a(f"buffer_load_dwordx4 v5, {srd(S_WS)}, s59 offen offset:{1024*n}{SC1} lds")
    a(f"s_and_b32 s56, s{S_WAVE}, 1")
    a(f"s_lshr_b32 s57, s{S_WAVE}, 1")
    VO, VW = 8, 9
    a("s_lshl_b32 s58, s56, 15")
    a(f"s_add_u32 s58, s58, {L3_O}")
    a(f"v_lshlrev_b32 v{VO}, 4, v{V_LANE}")
    a(f"v_add_u32 v{VO}, s58, v{VO}")
    a(f"v_lshrrev_b32 v10, 5, v{V_LANE}")
    a(f"v_bfe_u32 v11, v{V_LANE}, 2, 2")
    a("v_lshl_add_u32 v10, v10, 2, v11")
    a("v_lshlrev_b32 v10, 7, v10")
    a(f"v_bfe_u32 v12, v{V_LANE}, 4, 1")
    a(f"v_bfe_u32 v13, v{V_LANE}, 1, 1")
    a("v_lshl_add_u32 v12, v12, 1, v13")
    a("s_lshl_b32 s58, s57, 2")
    a("v_add_u32 v12, s58, v12")
    a("v_lshrrev_b32 v11, 1, v11")
    a("v_lshlrev_b32 v11, 2, v11")
    a("v_xor_b32 v12, v12, v11")
    a("v_lshl_add_u32 v10, v12, 4, v10")
    a(f"v_and_b32 v13, 1, v{V_LANE}")
    a(f"v_lshl_add_u32 v{VW}, v13, 3, v10")
    a(f"v_add_u32 v{VW}, {L3_WO}, v{VW}")
    ACC = 16; NB = 4; OB = 32; WB = 48
    for i in range(16): a(f"v_mov_b32 v{ACC+i}, 0")
    def rd(k):
        h, t = k // 2, k % 2
        b = k % NB
        a(f"ds_read_b128 v[{OB+4*b}:{OB+4*b+3}], v{VO} offset:{h*2048 + t*1024}")
        for jj in range(2):
            a(f"ds_read_b64_tr_b16 v[{WB+4*b+2*jj}:{WB+4*b+2*jj+1}], v{VW} offset:{(28*h + 16*t + 8*jj)*128}")
    a("s_waitcnt vmcnt(0)")
    a("s_barrier")
    for k in range(NB-1): rd(k)
    for k in range(32):
        if k + NB - 1 < 32:
            rd(k + NB - 1)
            a(f"s_waitcnt lgkmcnt({3*(NB-1)})")
        else:
            a(f"s_waitcnt lgkmcnt({3*(31-k)})")
        b = k % NB
        a(f"v_mfma_f32_32x32x16_bf16 v[{ACC}:{ACC+15}], v[{WB+4*b}:{WB+4*b+3}], v[{OB+4*b}:{OB+4*b+3}], v[{ACC}:{ACC+15}]")
    a("s_nop 15")
    P = 32
    for i in range(8): a(f"v_cvt_pk_bf16_f32 v{P+i}, v{ACC+2*i}, v{ACC+2*i+1}")
    a(f"v_and_b32 v10, 31, v{V_LANE}")
    a("s_lshl_b32 s58, s54, 6")
    a("s_lshl_b32 s59, s56, 5")
    a("s_add_u32 s58, s58, s59")
    a("v_add_u32 v10, s58, v10")
    a("v_mul_u32_u24 v10, 1792, v10")
    a(f"v_lshrrev_b32 v11, 5, v{V_LANE}")
    a("v_lshl_add_u32 v10, v11, 4, v10")
    a("s_lshl_b32 s58, s55, 7")
    a("s_lshl_b32 s59, s57, 6")
    a("s_add_u32 s58, s58, s59")
    a("s_add_u32 s58, s58, 896")
    a(f"v_permlane32_swap_b32 v{P}, v{P+2}")
    a(f"v_permlane32_swap_b32 v{P+1}, v{P+3}")
    a(f"v_permlane32_swap_b32 v{P+4}, v{P+6}")
    a(f"v_permlane32_swap_b32 v{P+5}, v{P+7}")
    a("s_nop 1")
    a(f"buffer_store_dwordx4 v[{P}:{P+3}], v10, {srd(S_OUT)}, s58 offen")
    a(f"buffer_store_dwordx4 v[{P+4}:{P+7}], v10, {srd(S_OUT)}, s58 offen offset:32")
    a(f"s_branch {Lend}")
    a.label(Lpost)
    a(f"s_sub_u32 s56, s{S_WAVE}, 4")
    a("s_lshl_b32 s57, s55, 5")
    a(f"v_and_b32 v2, 31, v{V_LANE}")
    a("v_add_u32 v2, s57, v2")
    a("v_lshlrev_b32 v2, 4, v2")
    a(f"v_add_u32 v2, {FL_C}, v2")
    a(f"v_lshrrev_b32 v10, 3, v{V_LANE}")
    a("s_lshl_b32 s58, s54, 6")
    a("s_lshl_b32 s59, s56, 4")
    a("s_add_u32 s58, s58, s59")
    a("v_add_u32 v10, s58, v10")
    a(f"v_and_b32 v11, 7, v{V_LANE}")
    a("v_lshlrev_b32 v11, 4, v11")
    a("s_lshl_b32 s58, s55, 7")
    a("v_add_u32 v11, s58, v11")
    a("v_mul_u32_u24 v12, 896, v10")
    a("v_add_u32 v12, v12, v11")
    a(f"buffer_load_dwordx4 v[16:19], v12, {srd(S_AQ)}, 0 offen")
    a(f"v_add_u32 v12, {8*896}, v12")
    a(f"buffer_load_dwordx4 v[20:23], v12, {srd(S_AQ)}, 0 offen")
    a("v_mul_u32_u24 v13, 1792, v10")
    a("v_add_u32 v13, v13, v11")
    poll(a, 2)
    a(f"v_and_b32 v3, 7, v{V_LANE}")
    a(f"v_bfe_u32 v4, v{V_LANE}, 4, 1")
    a("v_lshlrev_b32 v4, 2, v4")
    a("v_xor_b32 v3, v3, v4")
    a("v_lshlrev_b32 v3, 4, v3")
    a(f"v_lshrrev_b32 v4, 3, v{V_LANE}")
    a("v_lshl_add_u32 v6, v4, 12, v3")
    a("s_lshl_b32 s57, s55, 6")
    a("s_lshl_b32 s58, s56, 4")
    a("s_add_u32 s57, s57, s58")
    a("s_lshl_b32 s57, s57, 12")
    a("s_lshl_b32 s58, s54, 7")
    a("s_add_u32 s57, s57, s58")
    a(f"s_add_u32 s57, s57, {WS_Z}")
    a("s_lshl_b32 s58, s56, 11")
    a(f"s_add_u32 m0, s58, {L3_Z}")
    a("s_nop 0")
    a(f"buffer_load_dwordx4 v6, {srd(S_WS)}, s57 offen{SC1} lds")
    a(f"s_add_u32 m0, s58, {L3_Z + 1024}")
    a(f"s_add_u32 s57, s57, {8*4096}")
    a(f"buffer_load_dwordx4 v6, {srd(S_WS)}, s57 offen{SC1} lds")
    a(f"v_lshrrev_b32 v14, 4, v{V_LANE}")
    a(f"v_bfe_u32 v15, v{V_LANE}, 2, 2")
    a("v_lshl_add_u32 v14, v14, 3, v15")
    a("v_lshlrev_b32 v14, 7, v14")
    a(f"v_bfe_u32 v24, v{V_LANE}, 1, 1")
    a("s_lshl_b32 s58, s56, 1")
    a("v_add_u32 v24, s58, v24")
    a("v_lshrrev_b32 v15, 1, v15")
    a("v_lshlrev_b32 v15, 2, v15")
    a("v_xor_b32 v24, v24, v15")
    a("v_lshl_add_u32 v14, v24, 4, v14")
    a(f"v_and_b32 v24, 1, v{V_LANE}")
    a("v_lshl_add_u32 v14, v24, 3, v14")
    a(f"v_add_u32 v14, {L3_Z}, v14")
    a(f"v_and_b32 v24, 15, v{V_LANE}")
    a(f"v_lshrrev_b32 v25, 4, v{V_LANE}")
    a("v_and_b32 v26, 7, v24")
    a("v_xor_b32 v25, v25, v26")
    a("v_xor_b32 v26, 4, v25")
    a("s_lshl_b32 s58, s56, 11")
    a(f"s_add_u32 s58, s58, {L3_B}")
    a("v_lshlrev_b32 v24, 7, v24")
    a("v_add_u32 v24, s58, v24")
    a("v_lshl_add_u32 v25, v25, 4, v24")
    a("v_lshl_add_u32 v26, v26, 4, v24")
    a(f"v_lshrrev_b32 v27, 3, v{V_LANE}")
    a(f"v_and_b32 v28, 7, v{V_LANE}")
    a("v_xor_b32 v28, v28, v27")
    a("v_lshlrev_b32 v28, 4, v28")
    a("v_lshl_add_u32 v28, v27, 7, v28")
    a("v_add_u32 v28, s58, v28")
    a("s_waitcnt vmcnt(0)")
    a("s_barrier")
    for u in range(2):
        for jj in range(2):
            a(f"ds_read_b64_tr_b16 v[{32+4*u+2*jj}:{33+4*u+2*jj}], v14 offset:{(32*u + 4*jj)*128}")
    a("s_waitcnt lgkmcnt(0)")
    a("ds_write_b128 v25, v[32:35]")
    a("ds_write_b128 v26, v[36:39]")
    a("s_waitcnt lgkmcnt(0)")
    a("ds_read_b128 v[40:43], v28")
    a("ds_read_b128 v[44:47], v28 offset:1024")
    a("s_waitcnt lgkmcnt(0)")
    for n in range(2):
        Z, Q = 40 + 4*n, 16 + 4*n
        for r in range(4):
            a(f"v_lshlrev_b32 v48, 16, v{Z+r}")
            a(f"v_and_b32 v49, 0xffff0000, v{Z+r}")
            a(f"v_lshlrev_b32 v50, 16, v{Q+r}")
            a(f"v_and_b32 v51, 0xffff0000, v{Q+r}")
            a("v_mul_f32 v48, v48, v50")
            a("v_mul_f32 v49, v49, v51")
            a(f"v_cvt_pk_bf16_f32 v{52+4*n+r}, v48, v49")
    a(f"buffer_store_dwordx4 v[52:55], v13, {srd(S_OUT)}, 0 offen")
    a(f"v_add_u32 v13, {8*1792}, v13")
    a(f"buffer_store_dwordx4 v[56:59], v13, {srd(S_OUT)}, 0 offen")
    a("s_barrier")
    a.label(Lend)

def finale(a):
    L = lab("fin")
    a("s_cmp_lg_u32 s2, 255")
    a(f"s_cbranch_scc1 {L}")
    a(f"s_cmp_lg_u32 s{S_WAVE}, 0")
    a(f"s_cbranch_scc1 {L}")
    for q in range(4):
        a(f"v_lshlrev_b32 v2, 4, v{V_LANE}")
        a(f"v_add_u32 v2, {FL_B + q*1024}, v2")
        poll(a, 2)
    a(f"s_add_u32 s94, s{S_NRAW}, 1")
    a("v_mov_b32 v250, s94")
    a(f"v_mov_b32 v251, {FL_N}")
    a("s_mov_b64 exec, 1")
    a(f"buffer_store_dword v250, v251, {srd(S_WS)}, 0 offen sc1")
    a("s_mov_b64 exec, -1")
    a.label(L)

def kernel_text(name):
    a = Asm()
    G.uid = 0
    ex = "L_exit"
    prologue(a, ex)
    stamp_begin(a)
    stamp(a, 0)
    phase1(a)
    conv_phase(a)
    attention(a)
    phase3(a)
    finale(a)
    if STAMP_ON:
        a("s_waitcnt vmcnt(0)")
        stamp_flush(a)
    a.label(ex)
    a("s_endpgm")
    return a.text()
```

```python
import os, struct
from asmlib import *
S = 2048; D = 448; H = 16; DH = 28
WS_Q  = 0x000000; WS_KV = 0x200000; WS_U  = 0x600000; WS_Z  = 0x800000; WS_O  = 0xA00000
WS_STAMP = 0xC00000
WS_FLAG = 0xD00000
FL_A, FL_B, FL_C, FL_D, FL_N = [WS_FLAG + 0x1000*i for i in range(5)]
WS_SIZE = 0xE00000
S_WS, S_X, S_WQKV, S_AK, S_AV, S_SH, S_AQ, S_SK, S_SD, S_WO, S_OUT, S_DBG = [4 + 4*i for i in range(12)]
SRD_INFO = [(S_AQ, 0, 1835008), (S_AK, 8, 1835008), (S_AV, 16, 1835008), (S_SH, 24, 3584),
    (S_SK, 32, 1835008), (S_SD, 40, 896), (S_X, 48, 1835008), (S_WQKV, 56, 1204224),
    (S_WO, 64, 401408), (S_OUT, 72, 3670016), (S_DBG, 80, 256), (S_WS, 88, WS_SIZE)]
S_WAVE = 3; V_LANE = 1; S_NONCE = 93; S_NRAW = 63
SC1 = " sc1"
NT = os.environ.get("NT", " nt")
QSCALE = float(28 ** -0.5 * 1.4426950408889634)
def f32hex(x): return "0x%08x" % struct.unpack("<I", struct.pack("<f", x))[0]
def srd(b): return f"s[{b}:{b+3}]"
SLOT = 28672; XB = 16384; NSLOT = 3
L1_BOUNCE = NSLOT * SLOT
RING = 0
LC_RED = 65536
HC_PITCH = 4160; HC_CH = 4 * HC_PITCH
LC_HC = 98304
LC_U = LC_HC + 2 * HC_CH
U_PITCH = 4608
LC_END = LC_U + 2 * U_PITCH
LC_U2 = LC_HC + 16384
L3_WO = 98304
LA_COMB = 81920
L3_O = 0; L3_Z = 65536; L3_B = L3_Z + 8192
L_CNT = L3_WO + 57 * 1024
LDS_SIZE = L_CNT + 128
F_ISS, F_RDY, F_DONE = 4, 12, 20

STAMP_ON = False
STAMP_RT = False
NSTAMP = 11
SPIN_MAX = 1 << 16
class G:
    uid = 0
def lab(p):
    G.uid += 1
    return f"L_{p}_{G.uid}"
def stamp(a, idx):
    if not STAMP_ON: return
    a(f"{'s_memrealtime' if STAMP_RT else 's_memtime'} s[{64+2*idx}:{65+2*idx}]")
def stamp_begin(a):
    if not STAMP_ON: return
    for i in range(64, 88): a(f"s_mov_b32 s{i}, 0")
    a("s_memrealtime s[86:87]")
    a("s_waitcnt lgkmcnt(0)")
def stamp_flush(a):
    if not STAMP_ON: return
    if STAMP_RT:
        a("s_memrealtime s[96:97]")
        a("s_waitcnt lgkmcnt(0)")
        a("s_not_b32 s86, s86")
        for i in range(NSTAMP): a(f"v_mov_b32 v{8+i}, s{64+2*i}")
        a("v_mov_b32 v19, s86")
        a("v_mov_b32 v20, s96")
        a("s_mov_b64 exec, 1")
        for i in range(13):
            a(f"v_mov_b32 v2, {4*i}")
            a(f"buffer_atomic_umax v{8+i}, v2, {srd(S_DBG)}, 0 offen sc1") if False else a(f"buffer_atomic_umax v{8+i}, v2, {srd(S_DBG)}, 0 offen")
        a("s_mov_b64 exec, -1")
        return
    a("s_memrealtime s[96:97]")
    a("s_waitcnt lgkmcnt(0)")
    a("s_lshl_b32 s98, s2, 3")
    a(f"s_add_u32 s98, s98, s{S_WAVE}")
    a("s_lshl_b32 s98, s98, 6")
    a(f"s_add_u32 s98, s98, {WS_STAMP}")
    for i in range(NSTAMP): a(f"v_mov_b32 v{8+i}, s{64+2*i}")
    a(f"v_mov_b32 v{8+11}, s86")
    a(f"v_mov_b32 v{8+12}, s96")
    a("v_mov_b32 v2, 0")
    a("s_mov_b64 exec, 1")
    for g in range(3): a(f"buffer_store_dwordx4 v[{8+4*g}:{11+4*g}], v2, {srd(S_WS)}, s98 offen offset:{16*g}")
    a(f"buffer_store_dword v20, v2, {srd(S_WS)}, s98 offen offset:48")
    a("s_mov_b64 exec, -1")

KARG = {b: 64 + off//4 for (b, off, nb) in SRD_INFO}
def build_srds(a, lst):
    if STAMP_ON: return
    if not getattr(a, "karg_waited", False):
        pass
    a("s_waitcnt lgkmcnt(0)")
    for (b, off, nb) in SRD_INFO:
        if b in lst:
            a(f"s_mov_b32 s{b}, s{KA0 + off//4}")
            a(f"s_mov_b32 s{b+1}, s{KA0 + off//4 + 1}")
            a(f"s_mov_b32 s{b+2}, {nb}")
            a(f"s_mov_b32 s{b+3}, 0x00020000")
KA0 = 64
def prologue(a, exit_label):
    a(f"s_cmp_ge_u32 s2, 256")
    a(f"s_cbranch_scc1 {exit_label}")
    a("s_load_dwordx16 s[64:79], s[0:1], 0")
    a("s_load_dwordx8 s[80:87], s[0:1], 64")
    a("v_lshrrev_b32 v2, 6, v0")
    a(f"v_and_b32 v{V_LANE}, 63, v0")
    a(f"v_readfirstlane_b32 s{S_WAVE}, v2")
    if STAMP_ON:
        a("s_waitcnt lgkmcnt(0)")
        for (b, off, nb) in SRD_INFO:
            a(f"s_mov_b32 s{b}, s{64 + off//4}")
            a(f"s_mov_b32 s{b+1}, s{64 + off//4 + 1}")
            a(f"s_mov_b32 s{b+2}, {nb}")
            a(f"s_mov_b32 s{b+3}, 0x00020000")

def tag_load(a):
    a(f"s_add_u32 s96, s{S_WS}, {FL_N}")
    a(f"s_addc_u32 s97, s{S_WS+1}, 0")
    a(f"s_load_dword s{S_NRAW}, s[96:97], 0")

def code_prefetch(a, lbl="L_pc_here"):
    a("s_getpc_b64 s[96:97]")
    a.label(lbl)
    a(f"v_lshlrev_b32 v244, 7, v{V_LANE}")
    a(f"s_lshl_b32 s58, s{S_WAVE}, 13")
    a("v_add_u32 v244, s58, v244")
    a(f"v_min_u32 v244, L_code_end-{lbl}-4, v244")
    a("global_load_dword v245, v244, s[96:97]")
def code_prefetch2(a): code_prefetch(a, "L_pc_here2")

def nonce_ready(a):
    a(f"s_mul_i32 s{S_NONCE}, s{S_NRAW}, 0x9E3779B1")
    a(f"s_add_u32 s{S_NONCE}, s{S_NONCE}, 0x7F4A7C15")

def signal(a, base, idx_sreg):
    L = lab("sig")
    a(f"s_cmp_lg_u32 s{S_WAVE}, 0")
    a(f"s_cbranch_scc1 {L}")
    a(f"s_lshl_b32 s94, {idx_sreg}, 4")
    a(f"s_add_u32 s94, s94, {base}")
    a(f"v_mov_b32 v250, s{S_NONCE}")
    a("v_mov_b32 v251, 0")
    a("s_mov_b64 exec, 1")
    a(f"buffer_store_dword v250, v251, {srd(S_WS)}, s94 offen sc1")
    a("s_mov_b64 exec, -1")
    a.label(L)

def signal_now(a, base, idx_sreg):
    a(f"s_lshl_b32 s94, {idx_sreg}, 4")
    a(f"s_add_u32 s94, s94, {base}")
    a(f"v_mov_b32 v250, s{S_NONCE}")
    a("v_mov_b32 v251, 0")
    a("s_mov_b64 exec, 1")
    a(f"buffer_store_dword v250, v251, {srd(S_WS)}, s94 offen sc1")
    a("s_mov_b64 exec, -1")

def signal_last(a, cnt, nwaves, base, idx_sreg):
    L = lab("sl")
    a(f"v_mov_b32 v250, {L_CNT + 4*cnt}")
    a("v_mov_b32 v251, 1")
    a("s_mov_b64 exec, 1")
    a("ds_add_rtn_u32 v251, v250, v251")
    a("s_waitcnt lgkmcnt(0)")
    a("s_mov_b64 exec, -1")
    a("v_readfirstlane_b32 s94, v251")
    a("s_nop 3")
    a(f"s_cmp_lg_u32 s94, {nwaves-1}")
    a(f"s_cbranch_scc1 {L}")
    signal_now(a, base, idx_sreg)
    a.label(L)

def lds_spin(a, idx_expr_sreg, target, vtmp=250):
    L = lab("ls"); E = lab("lsx")
    a(f"s_lshl_b32 s94, {idx_expr_sreg}, 2")
    a(f"s_add_u32 s94, s94, {L_CNT}")
    a(f"v_mov_b32 v{vtmp}, s94")
    a("s_mov_b32 s96, 0")
    a.label(L)
    a(f"ds_read_b32 v{vtmp+1}, v{vtmp}")
    a("s_add_u32 s96, s96, 1")
    a("s_waitcnt lgkmcnt(0)")
    a(f"v_readfirstlane_b32 s94, v{vtmp+1}")
    a(f"s_cmp_gt_u32 s96, {1 << 20}")
    a(f"s_cbranch_scc1 {E}")
    a(f"s_cmp_lt_u32 s94, {target}")
    a(f"s_cbranch_scc1 {L}")
    a.label(E)

def lds_add1(a, idx_expr_sreg, vtmp=250):
    if isinstance(idx_expr_sreg, int):
        a(f"v_mov_b32 v{vtmp}, {L_CNT + 4*idx_expr_sreg}")
    else:
        a(f"s_lshl_b32 s94, {idx_expr_sreg}, 2")
        a(f"s_add_u32 s94, s94, {L_CNT}")
        a(f"v_mov_b32 v{vtmp}, s94")
    a(f"v_mov_b32 v{vtmp+1}, 1")
    a("s_mov_b64 exec, 1")
    a(f"ds_add_u32 v{vtmp}, v{vtmp+1}")
    a("s_mov_b64 exec, -1")

def poll(a, vaddr):
    L = lab("poll"); E = lab("pollx")
    a("s_mov_b32 s94, 0")
    a.label(L)
    a(f"buffer_load_dword v249, v{vaddr}, {srd(S_WS)}, 0 offen sc1")
    a("s_add_u32 s94, s94, 1")
    a(f"s_cmp_gt_u32 s94, {SPIN_MAX}")
    a("s_waitcnt vmcnt(0)")
    a(f"s_cbranch_scc1 {E}")
    a(f"v_cmp_ne_u32 vcc, s{S_NONCE}, v249")
    a(f"s_cbranch_vccnz {L}")
    a.label(E)

def prepass_compute(a, R, lds_off, T=184, SH=128, VWR=114):
    for e in range(8):
        sel = "s88" if e % 2 == 0 else "s89"
        r = e // 2
        a(f"v_perm_b32 v{T+e}, v{R+4+r}, v{R+r}, {sel}")
        a(f"v_perm_b32 v{T+8+e}, v{R+12+r}, v{R+8+r}, {sel}")
    for e in range(8): a(f"v_dot2_f32_bf16 v{T+16+e}, v{T+e}, v{SH+2*e}, 0")
    for e in range(8): a(f"v_dot2_f32_bf16 v{T+16+e}, v{T+8+e}, v{SH+1+2*e}, v{T+16+e}")
    for e in range(8):
        r = e // 2
        if e % 2 == 0: a(f"v_lshlrev_b32 v{T+e}, 16, v{R+16+r}")
        else: a(f"v_and_b32 v{T+e}, 0xffff0000, v{R+16+r}")
    for e in range(8): a(f"v_mul_f32 v{T+16+e}, v{T+16+e}, v{T+e}")
    for r in range(4): a(f"v_cvt_pk_bf16_f32 v{T+24+r}, v{T+16+2*r}, v{T+17+2*r}")
    a(f"ds_write_b128 v{VWR}, v[{T+24}:{T+27}] offset:{lds_off}")

def phase1(a, Lconv_h, Lconv_g):
    a("s_and_b32 s52, s2, 7")
    a("s_lshr_b32 s53, s2, 3")
    a("s_lshr_b32 s54, s52, 1")
    a("s_lshl_b32 s54, s54, 2")
    a("s_and_b32 s55, s53, 3")
    a("s_add_u32 s54, s54, s55")
    a("s_and_b32 s55, s52, 1")
    a("s_lshl_b32 s55, s55, 3")
    a("s_lshr_b32 s56, s53, 2")
    a("s_add_u32 s55, s55, s56")
    Lg = lab("gemmw")
    a(f"s_cmp_lt_u32 s{S_WAVE}, 4")
    a(f"s_cbranch_scc1 {Lg}")
    a(f"s_sub_u32 s58, s{S_WAVE}, 4")
    a(f"v_lshrrev_b32 v50, 3, v{V_LANE}")
    a("v_mul_u32_u24 v50, 896, v50")
    a(f"v_and_b32 v51, 7, v{V_LANE}")
    a(f"v_lshrrev_b32 v52, 4, v{V_LANE}")
    a("v_xor_b32 v51, v51, v52")
    a("v_xor_b32 v52, 4, v51")
    a("v_lshl_add_u32 v51, v51, 4, v50")
    a("v_lshl_add_u32 v52, v52, 4, v50")
    for m in range(3):
        a(f"v_add_u32 v53, {64*m}, v{V_LANE}")
        a("v_mul_u32_u24 v54, 5462, v53")
        a("v_lshrrev_b32 v54, 16, v54")
        a("v_mul_u32_u24 v55, 12, v54")
        a("v_sub_u32 v55, v53, v55")
        a("v_mul_u32_u24 v54, 2688, v54")
        a(f"v_lshl_add_u32 v{56+m}, v55, 4, v54")
    a("s_lshl_b32 s60, s54, 7")
    a("s_lshl_b32 s61, s58, 5")
    a("s_add_u32 s60, s60, s61")
    a("s_mul_i32 s60, s60, 896")
    a("s_mul_i32 s61, s58, 43008")
    a("s_mul_i32 s62, s55, 168")
    a("s_add_u32 s61, s61, s62")
    a("s_lshl_b32 s62, s58, 12")
    a("s_mul_i32 s59, s58, 3072")
    build_srds(a, [S_X, S_WQKV])
    a("s_lshr_b32 s95, s53, 2")
    a("s_and_b32 s92, s53, 3")
    a("s_lshl_b32 s92, s92, 1")
    a("s_add_u32 s95, s95, s92")
    a("s_cmp_ge_u32 s95, 7")
    a("s_cselect_b32 s92, 7, 0")
    a("s_sub_u32 s95, s95, s92")
    a("s_mov_b32 s57, s95")
    def adv(r):
        a(f"s_add_u32 {r}, {r}, 1")
        a(f"s_cmp_eq_u32 {r}, 7")
        a(f"s_cselect_b32 {r}, 0, {r}")
    def dma_x(k):
        slot = (k % NSLOT) * SLOT
        a("s_lshl_b32 s98, s95, 7")
        a("s_add_u32 s98, s98, s60")
        for n in range(4):
            a(f"s_add_u32 m0, s62, {slot + n*1024}")
            a(f"s_add_u32 s92, s98, {n*8*896}")
            a(f"buffer_load_dwordx4 v{51 + (n & 1)}, {srd(S_X)}, s92 offen{NT} lds")
        adv("s95")
    def dma_w(k):
        slot = (k % NSLOT) * SLOT
        a(f"s_mul_i32 s92, s57, {64*2688}")
        a("s_add_u32 s92, s92, s61")
        for m in range(3):
            a(f"s_add_u32 m0, s59, {slot + XB + m*1024}")
            a("s_nop 0")
            a(f"buffer_load_dwordx4 v{56+m}, {srd(S_WQKV)}, s92 offen{NT} lds")
        adv("s57")
    stamp(a, 5)
    dma_x(0)
    stamp(a, 6)
    dma_w(0); dma_x(1)
    stamp(a, 2)
    a("s_barrier")
    stamp(a, 1)
    if os.environ.get("X0LAT"):
        a("s_waitcnt vmcnt(7)")
        stamp(a, 3)
    for k in range(7):
        a(f"s_waitcnt vmcnt({4 if k < 6 else 0})")
        lds_add1(a, F_RDY + k)
        if k == 0: stamp(a, 8)
        if k + 1 <= 6: dma_w(k + 1)
        if k + 2 <= 6:
            if k + 2 >= NSLOT:
                a(f"s_movk_i32 s88, {F_DONE + k + 2 - NSLOT}")
                lds_spin(a, "s88", 4)
            dma_x(k + 2)
        elif k == 5:
            pass
    build_srds(a, [S_WS, S_SK])
    tag_load(a)
    HS = [S_AK, S_AV]
    a("s_lshl_b32 s90, s2, 1")
    a("s_cmp_ge_u32 s2, 224")
    a("s_cselect_b32 s90, 0, s90")
    a("s_lshl_b32 s90, s90, 12")
    a("s_lshl_b32 s88, s58, 6")
    a(f"v_add_u32 v2, s88, v{V_LANE}")
    a("v_lshlrev_b32 v3, 4, v2")
    a("v_subrev_u32 v4, 16, v3")
    a("v_cmp_eq_u32 vcc, 0, v2")
    a("v_mov_b32 v5, 0x80000000")
    a("s_nop 0")
    a("v_cndmask_b32 v4, v4, v5, vcc")
    a(f"v_cmp_eq_u32 vcc, 0, v{V_LANE}")
    a("v_mov_b32 v6, 4080")
    a("s_nop 0")
    a("v_cndmask_b32 v6, v5, v6, vcc")
    for ch in range(2):
        a(f"s_add_u32 s{HS[ch]}, s{S_SK}, s90")
        a(f"s_addc_u32 s{HS[ch]+1}, s{S_SK+1}, 0")
        a(f"s_movk_i32 s{HS[ch]+2}, 4096")
        a(f"s_mov_b32 s{HS[ch]+3}, 0x00020000")
        a("s_add_u32 s90, s90, 4096")
        D0 = 8 + 12*ch
        a(f"buffer_load_dwordx4 v[{D0}:{D0+3}], v4, {srd(HS[ch])}, 0 offen{NT}")
        a(f"buffer_load_dwordx4 v[{D0+4}:{D0+7}], v3, {srd(HS[ch])}, 0 offen{NT}")
        a(f"buffer_load_dwordx4 v[{D0+8}:{D0+11}], v6, {srd(HS[ch])}, 0 offen{NT}")
    a("s_waitcnt lgkmcnt(0)")
    nonce_ready(a)
    build_srds(a, [S_SD, S_WO, S_AQ, S_OUT])
    attn_map(a)
    a("s_cmp_ge_u32 s2, 224")
    a(f"s_cbranch_scc1 {Lconv_h[1]}")
    a("s_waitcnt vmcnt(0)")
    a(f"v_cmp_eq_u32 vcc, 0, v{V_LANE}")
    a("v_mov_b32 v7, 4112")
    a("v_add_u32 v3, 16, v3")
    a("v_cndmask_b32 v7, 0, v7, vcc")
    def emit(Dr, dst, base):
        for j in range(4): a(f"v_alignbit_b32 v{36+j}, v{Dr+j+1}, v{Dr+j}, 16")
        for j in range(4): a(f"v_alignbit_b32 v{40+j}, v{Dr+j+2}, v{Dr+j+1}, 16")
        for j in range(4): a(f"v_mov_b32 v{44+j}, v{Dr+j+1}")
        a(f"ds_write_b128 v{dst}, v[36:39] offset:{base}")
        a(f"ds_write_b128 v{dst}, v[44:47] offset:{base+HC_PITCH}")
        a(f"ds_write_b128 v{dst}, v[40:43] offset:{base+2*HC_PITCH}")
        a(f"ds_write_b128 v{dst}, v[{Dr+2}:{Dr+5}] offset:{base+3*HC_PITCH}")
        a("s_waitcnt lgkmcnt(0)")
    a(f"v_add_u32 v3, {LC_HC}, v3")
    a(f"v_add_u32 v7, {LC_HC}, v7")
    for ch in range(2): emit(8 + 12*ch, 3, ch*HC_CH)
    Lnt = lab("notail")
    a("s_cmp_eq_u32 s58, 3")
    a(f"s_cbranch_scc0 {Lnt}")
    for ch in range(2):
        D0 = 8 + 12*ch + 8
        for j in range(4): a(f"v_mov_b32 v{60+j}, v{D0+j}")
        for j in range(4): a(f"v_mov_b32 v{64+j}, 0")
        emit(60, 7, ch*HC_CH)
    a.label(Lnt)
    stamp(a, 4)
    a(f"s_branch {Lconv_h[0]}")
    a.label(Lg)
    a(f"v_lshlrev_b32 v2, 2, v{V_LANE}")
    a(f"v_add_u32 v2, {L_CNT}, v2")
    a("v_mov_b32 v3, 0")
    a("s_mov_b64 exec, 0xffffffff")
    a("ds_write_b32 v2, v3")
    a("s_mov_b64 exec, -1")
    Lnp = lab("nopre")
    build_srds(a, [S_AK, S_AV, S_SH, S_WS])
    tag_load(a)
    a("s_cmp_ge_u32 s2, 224")
    a(f"s_cbranch_scc1 {Lnp}")
    a("s_mul_i32 s56, s2, 9363")
    a("s_lshr_b32 s56, s56, 16")
    a("s_mul_i32 s88, s56, 7")
    a("s_sub_u32 s57, s2, s88")
    a(f"v_lshrrev_b32 v2, 3, v{V_LANE}")
    a(f"v_and_b32 v3, 7, v{V_LANE}")
    a("s_lshl_b32 s88, s56, 6")
    a(f"s_lshl_b32 s89, s{S_WAVE}, 4")
    a("s_add_u32 s88, s88, s89")
    a("v_add_u32 v4, s88, v2")
    a("v_mul_u32_u24 v5, 896, v4")
    a("v_lshlrev_b32 v6, 4, v3")
    a("s_lshl_b32 s89, s57, 7")
    a("v_add3_u32 v5, v5, v6, s89")
    a(f"v_subrev_u32 v7, {3*896}, v5")
    a("v_cmp_gt_u32 vcc, 3, v4")
    a("v_mov_b32 v10, 0x80000000")
    a(f"s_lshl_b32 s90, s{S_WAVE}, 12")
    a(f"s_add_u32 s90, s90, {LC_HC}")
    a("v_cndmask_b32 v8, v7, v10, vcc")
    a("s_mov_b32 m0, s90")
    a(f"v_lshlrev_b32 v9, 4, v{V_LANE}")
    a(f"buffer_load_dwordx4 v8, {srd(S_AK)}, 0 offen{NT} lds")
    a("s_add_u32 m0, s90, 1024")
    a(f"v_add_u32 v11, {8*896}, v7")
    a(f"buffer_load_dwordx4 v11, {srd(S_AK)}, 0 offen{NT} lds")
    a("s_add_u32 m0, s90, 2048")
    a(f"v_add_u32 v11, {16*896}, v7")
    a(f"buffer_load_dwordx4 v11, {srd(S_AK)}, 0 offen{NT} lds")
    a("s_add_u32 m0, s90, 3072")
    a("s_lshl_b32 s89, s57, 9")
    a(f"buffer_load_dwordx4 v9, {srd(S_SH)}, s89 offen{NT} lds")
    a(f"buffer_load_dwordx4 v[120:123], v5, {srd(S_AV)}, 0 offen{NT}")
    a(f"s_movk_i32 s89, {8*896}")
    a(f"buffer_load_dwordx4 v[124:127], v5, {srd(S_AV)}, s89 offen{NT}")
    a.label(Lnp)
    if os.environ.get("TLBW", "1") == "1":
        build_srds(a, [S_SK, S_WO, S_AQ, S_OUT])
        a(f"v_lshlrev_b32 v244, 21, v{V_LANE}")
        a(f"v_min_u32 v244, {0xC00000}, v244")
        a(f"s_cmp_eq_u32 s{S_WAVE}, 0")
        Lt1 = lab("tw"); Lt2 = lab("tw"); Lt3 = lab("tw"); Lt4 = lab("tw")
        a(f"s_cbranch_scc0 {Lt1}")
        a(f"buffer_load_dword v245, v244, {srd(S_WS)}, 0 offen")
        a.label(Lt1)
        a(f"s_cmp_eq_u32 s{S_WAVE}, 1")
        a(f"s_cbranch_scc0 {Lt2}")
        a("v_min_u32 v244, 0x200000, v244")
        a(f"buffer_load_dword v245, v244, {srd(S_OUT)}, 0 offen")
        a.label(Lt2)
        a(f"s_cmp_eq_u32 s{S_WAVE}, 2")
        a(f"s_cbranch_scc0 {Lt3}")
        a("v_mov_b32 v244, 0")
        a(f"buffer_load_dword v245, v244, {srd(S_SK)}, 0 offen")
        a(f"buffer_load_dword v246, v244, {srd(S_WO)}, 0 offen")
        a.label(Lt3)
        a(f"s_cmp_eq_u32 s{S_WAVE}, 3")
        a(f"s_cbranch_scc0 {Lt4}")
        a("v_mov_b32 v244, 0")
        a(f"buffer_load_dword v245, v244, {srd(S_AQ)}, 0 offen")
        a.label(Lt4)
    if os.environ.get("CODEPF", "1") == "1":
        Lcp = lab("nocp")
        a("s_cmp_lt_u32 s2, 248")
        a(f"s_cbranch_scc1 {Lcp}")
        code_prefetch(a)
        a.label(Lcp)
    a("s_waitcnt lgkmcnt(0)")
    a("s_barrier")
    def pre_compute():
        Lsk = lab("nopre2")
        a("s_cmp_ge_u32 s2, 224")
        a(f"s_cbranch_scc1 {Lsk}")
        a(f"s_lshl_b32 s90, s{S_WAVE}, 12")
        a(f"s_add_u32 s90, s90, {LC_HC}")
        a(f"v_lshlrev_b32 v112, 4, v{V_LANE}")
        a("v_add_u32 v112, s90, v112")
        a(f"v_and_b32 v116, 7, v{V_LANE}")
        a("v_lshlrev_b32 v113, 6, v116")
        a("s_add_u32 s89, s90, 3072")
        a("v_add_u32 v113, s89, v113")
        a("s_waitcnt vmcnt(0)")
        for i in range(4): a(f"ds_read_b128 v[{128+4*i}:{131+4*i}], v113 offset:{16*i}")
        K0 = [144, 164]
        for g in range(2):
            R = K0[g]
            for j in range(4): a(f"ds_read_b128 v[{R+4*j}:{R+4*j+3}], v112 offset:{(8*g + 3 - j)*128}")
            for r in range(4): a(f"v_mov_b32 v{R+16+r}, v{120+4*g+r}")
        a(f"v_lshrrev_b32 v117, 3, v{V_LANE}")
        a("v_lshrrev_b32 v114, 1, v117")
        a("v_and_b32 v114, 1, v114")
        a("v_lshlrev_b32 v114, 2, v114")
        a("v_xor_b32 v114, v114, v116")
        a("v_lshlrev_b32 v114, 4, v114")
        a("v_lshl_add_u32 v114, v117, 7, v114")
        a(f"s_lshl_b32 s89, s{S_WAVE}, 11")
        a(f"s_add_u32 s89, s89, {L1_BOUNCE}")
        a("v_add_u32 v114, s89, v114")
        a(f"v_bfe_u32 v118, v{V_LANE}, 2, 2")
        a("v_sub_u32 v118, 3, v118")
        a(f"v_lshrrev_b32 v115, 4, v{V_LANE}")
        a("v_lshlrev_b32 v115, 1, v115")
        a(f"v_bfe_u32 v119, v{V_LANE}, 1, 1")
        a("v_add_u32 v115, v115, v119")
        a("v_lshrrev_b32 v119, 1, v118")
        a("v_lshlrev_b32 v119, 2, v119")
        a("v_xor_b32 v115, v115, v119")
        a("v_lshlrev_b32 v115, 4, v115")
        a(f"v_and_b32 v119, 1, v{V_LANE}")
        a("v_lshl_add_u32 v115, v119, 3, v115")
        a("v_lshl_add_u32 v115, v118, 7, v115")
        a("v_add_u32 v115, s89, v115")
        a("s_mov_b32 s88, 0x05040100")
        a("s_mov_b32 s89, 0x07060302")
        a("s_waitcnt lgkmcnt(4)")
        prepass_compute(a, K0[0], 0)
        a("s_waitcnt lgkmcnt(1)")
        prepass_compute(a, K0[1], 1024)
        a("s_waitcnt lgkmcnt(0)")
        for i in range(4): a(f"ds_read_b64_tr_b16 v[{184+2*i}:{185+2*i}], v115 offset:{(3-i)*512}")
        a(f"s_lshl_b32 s89, s{S_WAVE}, 1")
        a("s_sub_u32 s89, 6, s89")
        a("v_xor_b32 v118, s89, v116")
        a("v_xor_b32 v119, 1, v118")
        a(f"v_lshlrev_b32 v112, 7, v{V_LANE}")
        a(f"v_add_u32 v112, {LC_U2}, v112")
        a("v_lshl_add_u32 v118, v118, 4, v112")
        a("v_lshl_add_u32 v119, v119, 4, v112")
        a("s_waitcnt lgkmcnt(0)")
        a("ds_write_b128 v118, v[184:187]")
        a("ds_write_b128 v119, v[188:191]")
        a("s_waitcnt lgkmcnt(0)")
        lds_add1(a, 3)
        a("v_xor_b32 v118, v116, v117")
        a(f"s_lshl_b32 s89, s{S_WAVE}, 11")
        a(f"s_add_u32 s89, s89, {LC_U2}")
        a("v_lshlrev_b32 v112, 7, v117")
        a("v_lshl_add_u32 v118, v118, 4, v112")
        a("v_add_u32 v118, s89, v118")
        a("s_lshl_b32 s89, s57, 6")
        a(f"s_lshl_b32 s90, s{S_WAVE}, 4")
        a("s_add_u32 s89, s89, s90")
        a("v_add_u32 v119, s89, v117")
        a("v_lshlrev_b32 v119, 12, v119")
        a("v_lshl_add_u32 v119, v116, 4, v119")
        a("s_lshl_b32 s89, s56, 7")
        a(f"s_sub_u32 s91, {WS_U + 2*1984}, s89")
        a(f"s_add_u32 s90, s91, {8*4096}")
        a("s_movk_i32 s59, 3")
        lds_spin(a, "s59", 4)
        a("ds_read_b128 v[184:187], v118")
        a("ds_read_b128 v[188:191], v118 offset:1024")
        a("s_waitcnt lgkmcnt(0)")
        a(f"buffer_store_dwordx4 v[184:187], v119, {srd(S_WS)}, s91 offen{SC1}")
        a(f"buffer_store_dwordx4 v[188:191], v119, {srd(S_WS)}, s90 offen{SC1}")
        a.label(Lsk)
    ACC = 64; XF = [8, 12]; WF = [16, 28]; VX = 40; VW = 44
    a(f"v_and_b32 v2, 31, v{V_LANE}")
    a(f"v_lshrrev_b32 v3, 5, v{V_LANE}")
    a("v_bfe_u32 v4, v2, 1, 3")
    a(f"s_lshl_b32 s58, s{S_WAVE}, 12")
    a("v_lshlrev_b32 v5, 7, v2")
    a("v_add_u32 v5, s58, v5")
    for ks in range(4):
        a(f"v_add_u32 v6, {2*ks}, v3")
        a("v_xor_b32 v6, v6, v4")
        a(f"v_lshl_add_u32 v{VX+ks}, v6, 4, v5")
    a(f"v_bfe_u32 v6, v{V_LANE}, 2, 2")
    a("v_lshl_add_u32 v6, v3, 3, v6")
    a("v_mul_u32_u24 v6, 192, v6")
    a(f"v_bfe_u32 v7, v{V_LANE}, 4, 1")
    a("v_lshl_add_u32 v6, v7, 5, v6")
    a(f"v_and_b32 v7, 3, v{V_LANE}")
    a("v_lshl_add_u32 v6, v7, 3, v6")
    a(f"v_add_u32 v{VW}, {XB}, v6")
    for i in range(48): a(f"v_mov_b32 v{ACC+i}, 0")
    VX2 = 45; VW2 = 49
    for k_ in range(4): a(f"v_add_u32 v{VX2+k_}, {2*SLOT}, v{VX+k_}")
    a(f"v_add_u32 v{VW2}, {2*SLOT}, v{VW}")
    build_srds(a, [S_SD, S_WO, S_AQ, S_OUT])
    a("s_waitcnt lgkmcnt(0)")
    nonce_ready(a)
    for c in range(7):
        sl = c % NSLOT
        if c == int(os.environ.get("PRE_AT", "3")): pre_compute()
        if c == int(os.environ.get("SIGA_C", "6")):
            La = lab("sigA")
            a("s_waitcnt vmcnt(0)")
            a("s_cmp_ge_u32 s2, 224")
            a(f"s_cbranch_scc1 {La}")
            signal_last(a, 2, 4, FL_A, "s2")
            a.label(La)
        a(f"s_movk_i32 s59, {F_RDY + c}")
        lds_spin(a, "s59", 4)
        if c in (0, 3, 6): stamp(a, {0: 1, 3: 3, 6: 4}[c])
        def rd_(ks, buf):
            vx, vw, so = (VX + ks, VW, sl*SLOT) if sl < 2 else (VX2 + ks, VW2, 0)
            a(f"ds_read_b128 v[{XF[buf]}:{XF[buf]+3}], v{vx} offset:{so}")
            for ft in range(3):
                for jj in range(2):
                    r0 = WF[buf] + 4*ft + 2*jj
                    a(f"ds_read_b64_tr_b16 v[{r0}:{r0+1}], v{vw} offset:{so + ks*3072 + jj*768 + 56*ft}")
        rd_(0, 0)
        for ks in range(4):
            buf = ks & 1
            if ks < 3:
                rd_(ks+1, buf ^ 1)
                a("s_waitcnt lgkmcnt(7)")
            else:
                a("s_waitcnt lgkmcnt(0)")
            if ks == 3 and c <= 3: lds_add1(a, F_DONE + c)
            for ft in range(3):
                w0 = WF[buf] + 4*ft
                a(f"v_mfma_f32_32x32x16_bf16 v[{ACC+16*ft}:{ACC+16*ft+15}], v[{w0}:{w0+3}], v[{XF[buf]}:{XF[buf]+3}], v[{ACC+16*ft}:{ACC+16*ft+15}]")
    a("s_lshl_b32 s58, s54, 2")
    a(f"s_add_u32 s58, s58, s{S_WAVE}")
    a(f"v_cmp_lt_u32 s[90:91], 31, v{V_LANE}")
    a(f"v_lshlrev_b32 v2, 4, v{V_LANE}")
    a(f"s_lshl_b32 s59, s{S_WAVE}, 11")
    a(f"s_add_u32 s59, s59, {L1_BOUNCE}")
    a(f"v_and_b32 v3, 31, v{V_LANE}")
    a("v_lshlrev_b32 v3, 6, v3")
    a(f"v_lshrrev_b32 v4, 5, v{V_LANE}")
    a("v_lshl_add_u32 v3, v4, 3, v3")
    a("v_add_u32 v3, s59, v3")
    a(f"v_bfe_u32 v5, v{V_LANE}, 2, 2")
    a("v_lshl_add_u32 v5, v4, 2, v5")
    a("v_lshlrev_b32 v5, 6, v5")
    a(f"v_bfe_u32 v6, v{V_LANE}, 4, 1")
    a("v_lshl_add_u32 v5, v6, 5, v5")
    a(f"v_and_b32 v6, 3, v{V_LANE}")
    a("v_lshl_add_u32 v5, v6, 3, v5")
    a("v_add_u32 v5, s59, v5")
    a("s_nop 3")
    stamp(a, 5)
    for ft in range(3):
        A0 = ACC + 16*ft; P = 8
        Lv = lab("vt"); Ld = lab("vd"); Lns = lab("nosc")
        a("s_mul_i32 s60, s55, 3")
        a(f"s_add_u32 s60, s60, {ft}")
        a("s_lshr_b32 s61, s60, 4")
        a("s_and_b32 s62, s60, 15")
        a("s_cmp_lg_u32 s61, 0")
        a(f"s_cbranch_scc1 {Lns}")
        a(f"s_mov_b32 s88, {f32hex(QSCALE)}")
        for i in range(16): a(f"v_mul_f32 v{A0+i}, s88, v{A0+i}")
        a.label(Lns)
        for i in range(8): a(f"v_cvt_pk_bf16_f32 v{P+i}, v{A0+2*i}, v{A0+2*i+1}")
        a("s_cmp_eq_u32 s61, 2")
        a("s_cselect_b32 s88, 0x3f80, 0")
        a("v_mov_b32 v16, s88")
        a("v_mov_b32 v17, 0")
        a(f"v_cndmask_b32 v{P+6}, v{P+6}, v16, s[90:91]")
        a(f"v_cndmask_b32 v{P+7}, v{P+7}, v17, s[90:91]")
        a(f"s_cbranch_scc1 {Lv}")
        a("s_cmp_eq_u32 s61, 0")
        a("s_cselect_b32 s88, 11, 12")
        a(f"s_cselect_b32 s89, {WS_Q}, {WS_KV}")
        a("s_lshl_b32 s92, s62, 6")
        a("s_add_u32 s92, s92, s58")
        a("s_lshl_b32 s92, s92, s88")
        a("s_add_u32 s92, s92, s89")
        a(f"buffer_store_dwordx4 v[{P}:{P+3}], v2, {srd(S_WS)}, s92 offen{SC1}")
        a(f"buffer_store_dwordx4 v[{P+4}:{P+7}], v2, {srd(S_WS)}, s92 offen offset:1024{SC1}")
        a(f"s_branch {Ld}")
        a.label(Lv)
        for blk in range(4): a(f"ds_write_b64 v3, v[{P+2*blk}:{P+2*blk+1}] offset:{16*blk}")
        a("s_waitcnt lgkmcnt(0)")
        for t in range(2):
            for jj in range(2):
                a(f"ds_read_b64_tr_b16 v[{20+4*t+2*jj}:{21+4*t+2*jj}], v5 offset:{(16*t+8*jj)*64}")
        a("s_lshl_b32 s92, s62, 6")
        a("s_add_u32 s92, s92, s58")
        a("s_lshl_b32 s92, s92, 12")
        a(f"s_add_u32 s92, s92, {WS_KV + 2048}")
        a("s_waitcnt lgkmcnt(0)")
        a(f"buffer_store_dwordx4 v[20:23], v2, {srd(S_WS)}, s92 offen{SC1}")
        a(f"buffer_store_dwordx4 v[24:27], v2, {srd(S_WS)}, s92 offen offset:1024{SC1}")
        a.label(Ld)
        a("s_nop 1")
    a("s_lshl_b32 s95, s55, 4")
    a("s_add_u32 s95, s95, s54")
    stamp(a, 6)
    attn_map(a)
    a("s_cmp_ge_u32 s2, 224")
    a(f"s_cbranch_scc1 {Lconv_g[1]}")
    a(f"s_branch {Lconv_g[0]}")

def attn_map(a):
    a("s_and_b32 s52, s2, 7")
    a("s_lshr_b32 s53, s2, 3")
    a("s_and_b32 s54, s53, 1")
    a("s_lshl_b32 s52, s52, 1")
    a("s_add_u32 s52, s52, s54")
    a("s_lshr_b32 s53, s53, 1")

def poll_B_addr(a, v):
    a("s_add_u32 s88, s52, 16")
    a("s_mul_i32 s88, s88, 21846")
    a("s_lshr_b32 s88, s88, 16")
    a("s_add_u32 s89, s52, 32")
    a("s_mul_i32 s89, s89, 21846")
    a("s_lshr_b32 s89, s89, 16")
    a("s_mul_i32 s90, s52, 21846")
    a("s_lshr_b32 s90, s90, 16")
    a("s_lshl_b32 s90, s90, 4")
    a("s_add_u32 s90, s90, s53")
    a("s_lshl_b32 s88, s88, 4")
    a("s_lshl_b32 s89, s89, 4")
    a(f"v_and_b32 v{v}, 15, v{V_LANE}")
    a(f"v_add_u32 v246, s88, v{v}")
    a(f"v_add_u32 v247, s89, v{v}")
    a(f"v_cmp_lt_u32 vcc, 15, v{V_LANE}")
    a(f"v_mov_b32 v248, s90")
    a("s_nop 0")
    a(f"v_cndmask_b32 v{v}, v246, v247, vcc")
    a(f"v_cmp_lt_u32 vcc, 31, v{V_LANE}")
    a("s_nop 1")
    a(f"v_cndmask_b32 v{v}, v{v}, v248, vcc")
    a(f"v_lshlrev_b32 v{v}, 4, v{v}")
    a(f"v_add_u32 v{v}, {FL_B}, v{v}")

QF_REG = 200
def q_prefetch(a):
    a(f"s_and_b32 s88, s{S_WAVE}, 3")
    a("s_lshl_b32 s89, s52, 6")
    a("s_lshl_b32 s90, s53, 2")
    a("s_add_u32 s89, s89, s90")
    a("s_add_u32 s89, s89, s88")
    a("s_lshl_b32 s89, s89, 11")
    a(f"s_add_u32 s89, s89, {WS_Q}")
    a(f"v_lshlrev_b32 v243, 4, v{V_LANE}")
    a(f"buffer_load_dwordx4 v[{QF_REG}:{QF_REG+3}], v243, {srd(S_WS)}, s89 offen{SC1}")
    a(f"buffer_load_dwordx4 v[{QF_REG+4}:{QF_REG+7}], v243, {srd(S_WS)}, s89 offen offset:1024{SC1}")

def conv_phase(a, Lh, Lg):
    Lj2 = lab("cvj2")
    a.label(Lh[0])
    a("s_lshr_b32 s88, s2, 5")
    a(f"v_and_b32 v2, 31, v{V_LANE}")
    a("v_mul_u32_u24 v2, 7, v2")
    a("v_add_u32 v2, s88, v2")
    a("v_lshlrev_b32 v2, 4, v2")
    a(f"v_add_u32 v2, {FL_A}, v2")
    poll(a, 2)
    stamp(a, 7)
    a(f"s_sub_u32 s55, s{S_WAVE}, 4")
    a(f"v_lshlrev_b32 v2, 4, v{V_LANE}")
    a("s_lshl_b32 s61, s55, 10")
    a("s_lshl_b32 s62, s2, 13")
    a("s_add_u32 s62, s62, s61")
    a(f"s_add_u32 s62, s62, {WS_U}")
    for ch in range(2):
        a(f"s_add_u32 m0, s61, {LC_U + ch*U_PITCH}")
        a(f"s_add_u32 s60, s62, {ch*4096}")
        a(f"buffer_load_dwordx4 v2, {srd(S_WS)}, s60 offen{SC1} lds")
    Lp = lab("nopad")
    a("s_cmp_lt_u32 s55, 2")
    a(f"s_cbranch_scc0 {Lp}")
    a(f"v_and_b32 v3, 31, v{V_LANE}")
    a("v_lshlrev_b32 v3, 4, v3")
    a(f"s_mul_i32 s60, s55, {U_PITCH}")
    a(f"s_add_u32 s60, s60, {LC_U + 4096}")
    a("v_add_u32 v3, s60, v3")
    for j in range(4): a(f"v_mov_b32 v{8+j}, 0")
    a("ds_write_b128 v3, v[8:11]")
    a.label(Lp)
    a("s_waitcnt vmcnt(0) lgkmcnt(0)")
    a("s_barrier")
    kv_prefetch(a, first=True)
    a("s_barrier")
    q_prefetch(a)
    a(f"s_branch {Lj2}")
    a.label(Lh[1])
    kv_prefetch(a, first=False)
    a("s_barrier")
    q_prefetch(a)
    a(f"s_branch {Lj2}")
    a.label(Lg[1])
    a("s_waitcnt vmcnt(0)")
    signal_last(a, 0, 4, FL_B, "s95")
    a("s_barrier")
    q_prefetch(a)
    a("s_waitcnt vmcnt(0)")
    a(f"s_branch {Lj2}")
    a.label(Lg[0])
    a(f"s_lshr_b32 s54, s{S_WAVE}, 1")
    a(f"s_and_b32 s55, s{S_WAVE}, 1")
    a("s_lshl_b32 s56, s2, 1")
    a("s_add_u32 s56, s56, s54")
    a("s_lshl_b32 s57, s2, 2")
    a(f"s_load_dword s60, s[{S_SD}:{S_SD+1}], s57")
    VA, VB = 2, 3
    a(f"v_lshrrev_b32 v4, 4, v{V_LANE}")
    a(f"v_bfe_u32 v5, v{V_LANE}, 2, 2")
    a(f"v_and_b32 v6, 3, v{V_LANE}")
    a(f"v_mul_u32_u24 v5, {HC_PITCH}, v5")
    a("v_lshl_add_u32 v5, v4, 4, v5")
    a("v_lshl_add_u32 v5, v6, 3, v5")
    a(f"s_mul_i32 s61, s54, {HC_CH}")
    a("s_lshl_b32 s62, s55, 8")
    a("s_add_u32 s61, s61, s62")
    a(f"s_add_u32 s61, s61, {LC_HC}")
    a(f"v_add_u32 v{VA}, s61, v5")
    a(f"v_and_b32 v6, 15, v{V_LANE}")
    a("v_lshlrev_b32 v7, 5, v6")
    a("v_lshlrev_b32 v5, 4, v4")
    a("v_sub_u32 v5, v5, v7")
    a(f"s_mul_i32 s61, s54, {U_PITCH}")
    a(f"s_add_u32 s61, s61, {LC_U + 480}")
    a("s_add_u32 s61, s61, s62")
    a(f"v_add_u32 v{VB}, s61, v5")
    ACC = 32; AB = [64, 128]
    for i in range(32): a(f"v_mov_b32 v{ACC+i}, 0")
    def rd_list(k, buf):
        L = []
        for t in range(8):
            for jj in range(2):
                r0 = AB[buf] + 4*t + 2*jj
                L.append(f"ds_read_b64_tr_b16 v[{r0}:{r0+1}], v{VA} offset:{64*(8*t + k) + 8*jj}")
            r0 = AB[buf] + 32 + 4*t
            L.append(f"ds_read_b128 v[{r0}:{r0+3}], v{VB} offset:{64*(-8*t + k + 56)}")
        return L
    a("s_waitcnt lgkmcnt(0)")
    a("s_barrier")
    stamp(a, 7)
    for i, ins in enumerate(rd_list(0, 0)):
        a(ins)
        if i == 11: a("s_waitcnt lgkmcnt(3)")
    for k in range(4):
        buf = k & 1
        a("s_waitcnt lgkmcnt(0)")
        nxt = rd_list(k+1, buf ^ 1) if k < 3 else []
        mf = []
        for t in range(8):
            for n in range(t, 8):
                A_ = AB[buf] + 4*t; B_ = AB[buf] + 32 + 4*(n - t)
                mf.append(f"v_mfma_f32_16x16x32_bf16 v[{ACC+4*n}:{ACC+4*n+3}], v[{A_}:{A_+3}], v[{B_}:{B_+3}], v[{ACC+4*n}:{ACC+4*n+3}]")
        ni = 0
        for i, m in enumerate(mf):
            a(m)
            if i % 3 != 2 and ni < len(nxt):
                a(nxt[ni]); ni += 1
        while ni < len(nxt):
            a(nxt[ni]); ni += 1
        if k == 0:
            a("s_waitcnt vmcnt(0) lgkmcnt(0)")
            signal_last(a, 0, 4, FL_B, "s95")
    a(f"v_lshlrev_b32 v4, 4, v{V_LANE}")
    a(f"s_lshl_b32 s61, s{S_WAVE}, 12")
    a(f"s_add_u32 s61, s61, {LC_RED}")
    a("v_add_u32 v5, s61, v4")
    a(f"s_xor_b32 s62, s{S_WAVE}, 1")
    a("s_lshl_b32 s62, s62, 12")
    a(f"s_add_u32 s62, s62, {LC_RED}")
    a("v_add_u32 v6, s62, v4")
    a("s_nop 1")
    stamp(a, 8)
    Lg1 = lab("g1"); Lg2 = lab("g2")
    a("s_cmp_eq_u32 s55, 0")
    a(f"s_cbranch_scc0 {Lg1}")
    for i in range(4): a(f"ds_write_b128 v5, v[{ACC+16+4*i}:{ACC+16+4*i+3}] offset:{1024*i}")
    a(f"s_branch {Lg2}")
    a.label(Lg1)
    for i in range(4): a(f"ds_write_b128 v5, v[{ACC+4*i}:{ACC+4*i+3}] offset:{1024*i}")
    a("s_waitcnt lgkmcnt(0)")
    for i in range(16): a(f"v_mov_b32 v{ACC+i}, v{ACC+16+i}")
    a.label(Lg2)
    a("s_waitcnt lgkmcnt(0)")
    a("s_barrier")
    q_prefetch(a)
    for i in range(4): a(f"ds_read_b128 v[{64+4*i}:{64+4*i+3}], v6 offset:{1024*i}")
    a(f"v_and_b32 v7, 15, v{V_LANE}")
    a(f"v_lshrrev_b32 v8, 4, v{V_LANE}")
    a("v_lshlrev_b32 v9, 5, v7")
    a("v_lshl_add_u32 v9, v8, 3, v9")
    a(f"s_mul_i32 s61, s54, {U_PITCH}")
    a(f"s_add_u32 s61, s61, {LC_U + 4088 - 3*512}")
    a("s_lshl_b32 s62, s55, 11")
    a("s_sub_u32 s61, s61, s62")
    a("v_sub_u32 v10, s61, v9")
    for i in range(4): a(f"ds_read_b64 v[{80+2*i}:{81+2*i}], v10 offset:{(3-i)*512}")
    a("s_waitcnt lgkmcnt(0)")
    a("s_cmp_eq_u32 s54, 0")
    a("s_cselect_b32 s61, 16, 0")
    a("s_lshl_b32 s60, s60, s61")
    a("s_and_b32 s60, s60, 0xffff0000")
    a("s_lshl_b32 s61, s56, 12")
    a("s_lshl_b32 s62, s55, 11")
    a("s_add_u32 s61, s61, s62")
    a(f"s_add_u32 s61, s61, {WS_Z}")
    for i in range(4):
        Y = ACC + 4*i; Pp = 64 + 4*i; U0 = 80 + 2*i
        for r in range(4): a(f"v_add_f32 v{Y+r}, v{Y+r}, v{Pp+r}")
        a(f"v_and_b32 v12, 0xffff0000, v{U0+1}")
        a(f"v_lshlrev_b32 v13, 16, v{U0+1}")
        a(f"v_and_b32 v14, 0xffff0000, v{U0}")
        a(f"v_lshlrev_b32 v15, 16, v{U0}")
        for r in range(4): a(f"v_fma_f32 v{Y+r}, v{12+r}, s60, v{Y+r}")
        a(f"v_cvt_pk_bf16_f32 v{16+2*i}, v{Y}, v{Y+1}")
        a(f"v_cvt_pk_bf16_f32 v{17+2*i}, v{Y+2}, v{Y+3}")
        a(f"buffer_store_dwordx2 v[{16+2*i}:{17+2*i}], v9, {srd(S_WS)}, s61 offen offset:{512*i}{SC1}")
    a.label(Lj2)
    a(f"s_cmp_lt_u32 s{S_WAVE}, 4")
    Lw = lab("j2w")
    a(f"s_cbranch_scc1 {Lw}")
    a("s_waitcnt vmcnt(0)")
    a.label(Lw)
    a("s_waitcnt lgkmcnt(0)")
    a("s_barrier")
    stamp(a, 9)

def kv_prefetch(a, first):
    poll_B_addr(a, 2)
    poll(a, 2)
    a(f"s_sub_u32 s88, s{S_WAVE}, 4")
    a(f"v_lshlrev_b32 v4, 4, v{V_LANE}")
    a("s_lshl_b32 s89, s52, 18")
    a("s_lshl_b32 s90, s88, 12")
    a("s_add_u32 s89, s89, s90")
    a(f"s_add_u32 s89, s89, {WS_KV}")
    for stg in range(2):
        for kh in range(2):
            a(f"s_add_u32 m0, s90, {stg*32768 + kh*16384}")
            a(f"s_add_u32 s91, s89, {kh*131072 + stg*16384}")
            for n in range(4):
                a(f"buffer_load_dwordx4 v4, {srd(S_WS)}, s91 offen offset:{n*1024}{SC1} lds")

def attention(a):
    a(f"s_and_b32 s54, s{S_WAVE}, 3")
    a(f"s_lshr_b32 s55, s{S_WAVE}, 2")
    QF, CI, S0, S1, P, KF, VF, O = QF_REG, 16, 32, 48, 64, 72, 80, 88
    VC, VN, VL16 = 2, 3, 4
    VWO = 104
    a(f"v_lshlrev_b32 v{VL16}, 4, v{V_LANE}")
    a("s_lshl_b32 s57, s52, 18")
    a("s_lshl_b32 s58, s55, 5")
    a("s_add_u32 s58, s58, s54")
    a("s_lshl_b32 s58, s58, 12")
    a("s_add_u32 s57, s57, s58")
    a(f"s_add_u32 s57, s57, {WS_KV + 2*16384}")
    a(f"s_lshl_b32 s58, s{S_WAVE}, 12")
    a("s_lshr_b32 s88, s2, 3")
    a("s_mul_i32 s89, s88, 9363")
    a("s_lshr_b32 s89, s89, 16")
    a("s_mul_i32 s89, s89, 7")
    a("s_sub_u32 s89, s88, s89")
    a(f"v_and_b32 v5, 7, v{V_LANE}")
    a(f"v_bfe_u32 v6, v{V_LANE}, 4, 1")
    a("v_lshlrev_b32 v6, 2, v6")
    a("v_xor_b32 v5, v5, v6")
    a("v_lshlrev_b32 v5, 4, v5")
    a(f"v_lshrrev_b32 v6, 3, v{V_LANE}")
    a("v_mul_u32_u24 v6, 896, v6")
    a(f"v_add_u32 v{VWO}, v5, v6")
    a(f"s_mul_i32 s62, s{S_WAVE}, {8*896}")
    a("s_lshl_b32 s89, s89, 7")
    a("s_add_u32 s62, s62, s89")
    a(f"s_lshl_b32 s56, s{S_WAVE}, 10")
    a(f"s_add_u32 s56, s56, {L3_WO}")
    for i in range(16):
        a(f"v_mov_b32 v{CI+i}, 0")
        a(f"v_mov_b32 v{O+i}, 0")
    a("s_lshl_b32 s59, s55, 14")
    a(f"v_add_u32 v{VC}, s59, v{VL16}")
    a(f"v_add_u32 v{VN}, 32768, v{VC}")
    a("s_mov_b32 s60, 65536")
    a("s_mov_b32 s61, 0")
    def rd(dst, base, off): a(f"ds_read_b128 v[{dst}:{dst+3}], v{base} offset:{off}")
    def qk1(Sx): a(f"v_mfma_f32_32x32x16_bf16 v[{Sx}:{Sx+15}], v[{KF}:{KF+3}], v[{QF}:{QF+3}], v[{CI}:{CI+15}]")
    def qk2(Sx): a(f"v_mfma_f32_32x32x16_bf16 v[{Sx}:{Sx+15}], v[{KF+4}:{KF+7}], v[{QF+4}:{QF+7}], v[{Sx}:{Sx+15}]")
    def pv(h_): a(f"v_mfma_f32_32x32x16_bf16 v[{O}:{O+15}], v[{VF+4*h_}:{VF+4*h_+3}], v[{P+4*h_}:{P+4*h_+3}], v[{O}:{O+15}]")
    def ex(Sc, lo, hi):
        for e in range(lo, hi): a(f"v_exp_f32 v{Sc+e}, v{Sc+e}")
    def cv(Sc, lo, hi):
        for e in range(lo, hi): a(f"v_cvt_pk_bf16_f32 v{P+e}, v{Sc+2*e}, v{Sc+2*e+1}")
    rd(KF, VC, 0); rd(KF+4, VC, 1024)
    for e in range(4, 8): a(f"v_mov_b32 v{P+e}, 0")
    a("s_waitcnt vmcnt(4) lgkmcnt(0)")
    qk1(S0); qk2(S0)
    rd(KF, VC, 4096)
    rd(VF+4, VC, 2048+1024)
    rd(KF+4, VC, 4096+1024)
    rd(VF, VC, 2048)
    a("s_nop 7")
    stamp(a, 10)
    Lloop = lab("atloop")
    a.raw(".p2align 6")
    a.label(Lloop)
    for i in range(4):
        Sc = S0 if i % 2 == 0 else S1
        Sn = S1 if i % 2 == 0 else S0
        if i == 2:
            a("s_waitcnt vmcnt(0)")
            a("s_barrier")
            Lc = lab("sigC")
            a("s_cmp_lg_u32 s61, 0")
            a(f"s_cbranch_scc1 {Lc}")
            a(f"s_cmp_lg_u32 s{S_WAVE}, 0")
            a(f"s_cbranch_scc1 {Lc}")
            a("s_cmp_ge_u32 s2, 224")
            a(f"s_cbranch_scc1 {Lc}")
            signal_now(a, FL_C, "s2")
            a.label(Lc)
            a("s_add_u32 m0, s58, s60")
            a("s_nop 0")
        def kvp(n): a(f"buffer_load_dwordx4 v{VL16}, {srd(S_WS)}, s57 offen offset:{n*1024}{SC1} lds")
        kb, kt = (VC, i+2) if i < 2 else (VN, i-2)
        vb, vt = (VC, i+1) if i < 3 else (VN, 0)
        a(f"s_setprio {[1,0,3,2][i]}")
        a("s_waitcnt lgkmcnt(2)")
        qk1(Sn)
        rd(KF, kb, kt*4096)
        if i >= 2: kvp(2*(i-2))
        ex(Sc, 0, 4)
        pv(1)
        rd(VF+4, VC, i*4096 + 2048 + 1024)
        ex(Sc, 4, 6)
        cv(Sc, 0, 2)
        ex(Sc, 6, 7)
        a("s_waitcnt lgkmcnt(2)")
        qk2(Sn)
        rd(KF+4, kb, kt*4096 + 1024)
        if i >= 2: kvp(2*(i-2) + 1)
        ex(Sc, 7, 9)
        cv(Sc, 2, 3)
        ex(Sc, 9, 11)
        cv(Sc, 3, 4)
        ex(Sc, 11, 13)
        pv(0)
        rd(VF, vb, vt*4096 + 2048)
        ex(Sc, 13, 16)
        if i == 3:
            Lw = lab("nowo")
            a(f"s_cmp_eq_u32 s{S_WAVE}, 0")
            a("s_cselect_b32 s88, 8, 7")
            a("s_cmp_ge_u32 s2, 224")
            a("s_cselect_b32 s88, 0, s88")
            a("s_cmp_ge_u32 s61, s88")
            a(f"s_cbranch_scc1 {Lw}")
            a("s_mov_b32 m0, s56")
            a("s_add_u32 s56, s56, 8192")
            a(f"buffer_load_dwordx4 v{VWO}, {srd(S_WO)}, s62 offen{NT} lds")
            a(f"s_add_u32 s62, s62, {64*896}")
            a.label(Lw)
        cv(Sc, 4, 8)
    a("s_add_u32 s57, s57, 16384")
    a("s_cmp_ge_u32 s61, 5")
    a("s_cselect_b32 s57, 0x7f000000, s57")
    a("s_add_u32 s60, s60, 32768")
    a("s_cmp_eq_u32 s60, 98304")
    a("s_cselect_b32 s60, 0, s60")
    a(f"v_mov_b32 v{VC}, v{VN}")
    a(f"v_add_u32 v{VN}, 32768, v{VN}")
    a(f"s_add_u32 s88, s59, {98304}")
    a(f"v_add_u32 v5, s88, v{VL16}")
    a(f"v_cmp_eq_u32 vcc, v{VN}, v5")
    a(f"v_add_u32 v6, s59, v{VL16}")
    a("s_add_u32 s61, s61, 1")
    a(f"v_cndmask_b32 v{VN}, v{VN}, v6, vcc")
    a("s_cmp_lt_u32 s61, 8")
    a(f"s_cbranch_scc1 {Lloop}")
    a("s_setprio 0")
    a("s_waitcnt vmcnt(0) lgkmcnt(0)")
    pv(1)
    a("s_barrier")
    a("s_nop 15")
    a("s_lshl_b32 s62, s54, 12")
    a(f"s_add_u32 s62, s62, {LA_COMB}")
    a(f"v_add_u32 v5, s62, v{VL16}")
    Lc0 = lab("c0"); Lend = lab("atend")
    a("s_cmp_eq_u32 s55, 0")
    a(f"s_cbranch_scc1 {Lc0}")
    for g in range(4): a(f"ds_write_b128 v5, v[{O+4*g}:{O+4*g+3}] offset:{1024*g}")
    a("s_waitcnt lgkmcnt(0)")
    a.label(Lc0)
    a("s_barrier")
    a("s_cmp_eq_u32 s55, 0")
    a(f"s_cbranch_scc0 {Lend}")
    for g in range(4): a(f"ds_read_b128 v[{S0+4*g}:{S0+4*g+3}], v5 offset:{1024*g}")
    a("s_waitcnt lgkmcnt(0)")
    for i in range(16): a(f"v_add_f32 v{O+i}, v{O+i}, v{S0+i}")
    a(f"v_mov_b32 v6, v{O+12}")
    a(f"v_mov_b32 v7, v{O+12}")
    a("s_nop 1")
    a("v_permlane32_swap_b32 v6, v7")
    a("s_nop 1")
    a("v_rcp_f32 v7, v7")
    a("s_nop 0")
    for i in range(16): a(f"v_mul_f32 v{O+i}, v{O+i}, v7")
    for i in range(8): a(f"v_cvt_pk_bf16_f32 v{P+i}, v{O+2*i}, v{O+2*i+1}")
    a(f"v_cmp_lt_u32 vcc, 31, v{V_LANE}")
    a("v_mov_b32 v6, 0")
    a("s_nop 0")
    a(f"v_cndmask_b32 v{P+6}, v{P+6}, v6, vcc")
    a(f"v_cndmask_b32 v{P+7}, v{P+7}, v6, vcc")
    a("s_lshl_b32 s62, s53, 2")
    a("s_add_u32 s62, s62, s54")
    a("s_lshl_b32 s62, s62, 4")
    a("s_add_u32 s62, s62, s52")
    a("s_lshl_b32 s62, s62, 11")
    a(f"s_add_u32 s62, s62, {WS_O}")
    a(f"buffer_store_dwordx4 v[{P}:{P+3}], v{VL16}, {srd(S_WS)}, s62 offen{SC1}")
    a(f"buffer_store_dwordx4 v[{P+4}:{P+7}], v{VL16}, {srd(S_WS)}, s62 offen offset:1024{SC1}")
    a("s_lshl_b32 s58, s53, 4")
    a("s_add_u32 s58, s58, s52")
    a("s_waitcnt vmcnt(0)")
    signal_last(a, 1, 4, FL_D, "s58")
    a.label(Lend)
    stamp(a, 10) if False else None

def phase3(a):
    Lend = lab("p3end"); Lpost = lab("post")
    a("s_cmp_ge_u32 s2, 224")
    a(f"s_cbranch_scc1 {Lend}")
    a("s_and_b32 s52, s2, 7")
    a("s_lshr_b32 s53, s2, 3")
    a("s_mul_i32 s54, s53, 9363")
    a("s_lshr_b32 s54, s54, 16")
    a("s_mul_i32 s55, s54, 7")
    a("s_sub_u32 s55, s53, s55")
    a("s_lshl_b32 s52, s52, 2")
    a("s_add_u32 s54, s54, s52")
    a(f"s_cmp_ge_u32 s{S_WAVE}, 4")
    a(f"s_cbranch_scc1 {Lpost}")
    a("s_lshr_b32 s56, s54, 1")
    a("s_lshl_b32 s56, s56, 4")
    a(f"v_and_b32 v2, 15, v{V_LANE}")
    a("v_add_u32 v2, s56, v2")
    a("v_lshlrev_b32 v2, 4, v2")
    a(f"v_add_u32 v2, {FL_D}, v2")
    poll(a, 2)
    a(f"v_lshlrev_b32 v5, 4, v{V_LANE}")
    a("s_lshl_b32 s57, s54, 16")
    a(f"s_lshl_b32 s58, s{S_WAVE}, 14")
    a("s_add_u32 s57, s57, s58")
    a(f"s_add_u32 s57, s57, {WS_O}")
    for q in range(4):
        a(f"s_add_u32 m0, s58, {L3_O + q*4096}")
        a(f"s_add_u32 s59, s57, {q*4096}")
        for n in range(4): a(f"buffer_load_dwordx4 v5, {srd(S_WS)}, s59 offen offset:{1024*n}{SC1} lds")
    a(f"s_and_b32 s56, s{S_WAVE}, 1")
    a(f"s_lshr_b32 s57, s{S_WAVE}, 1")
    VO, VW = 8, 9
    a("s_lshl_b32 s58, s56, 15")
    a(f"s_add_u32 s58, s58, {L3_O}")
    a(f"v_lshlrev_b32 v{VO}, 4, v{V_LANE}")
    a(f"v_add_u32 v{VO}, s58, v{VO}")
    a(f"v_lshrrev_b32 v10, 5, v{V_LANE}")
    a(f"v_bfe_u32 v11, v{V_LANE}, 2, 2")
    a("v_lshl_add_u32 v10, v10, 2, v11")
    a("v_lshlrev_b32 v10, 7, v10")
    a(f"v_bfe_u32 v12, v{V_LANE}, 4, 1")
    a(f"v_bfe_u32 v13, v{V_LANE}, 1, 1")
    a("v_lshl_add_u32 v12, v12, 1, v13")
    a("s_lshl_b32 s58, s57, 2")
    a("v_add_u32 v12, s58, v12")
    a("v_lshrrev_b32 v11, 1, v11")
    a("v_lshlrev_b32 v11, 2, v11")
    a("v_xor_b32 v12, v12, v11")
    a("v_lshl_add_u32 v10, v12, 4, v10")
    a(f"v_and_b32 v13, 1, v{V_LANE}")
    a(f"v_lshl_add_u32 v{VW}, v13, 3, v10")
    a(f"v_add_u32 v{VW}, {L3_WO}, v{VW}")
    ACC = 16; NB = 4; OB = 32; WB = 48
    for i in range(16): a(f"v_mov_b32 v{ACC+i}, 0")
    def rd(k):
        h, t = k // 2, k % 2
        b = k % NB
        a(f"ds_read_b128 v[{OB+4*b}:{OB+4*b+3}], v{VO} offset:{h*2048 + t*1024}")
        for jj in range(2):
            a(f"ds_read_b64_tr_b16 v[{WB+4*b+2*jj}:{WB+4*b+2*jj+1}], v{VW} offset:{(28*h + 16*t + 8*jj)*128}")
    a("s_waitcnt vmcnt(0)")
    a("s_barrier")
    for k in range(NB-1): rd(k)
    for k in range(32):
        if k + NB - 1 < 32:
            rd(k + NB - 1)
            a(f"s_waitcnt lgkmcnt({3*(NB-1)})")
        else:
            a(f"s_waitcnt lgkmcnt({3*(31-k)})")
        b = k % NB
        a(f"v_mfma_f32_32x32x16_bf16 v[{ACC}:{ACC+15}], v[{WB+4*b}:{WB+4*b+3}], v[{OB+4*b}:{OB+4*b+3}], v[{ACC}:{ACC+15}]")
    a("s_nop 15")
    P = 32
    for i in range(8): a(f"v_cvt_pk_bf16_f32 v{P+i}, v{ACC+2*i}, v{ACC+2*i+1}")
    a(f"v_and_b32 v10, 31, v{V_LANE}")
    a("s_lshl_b32 s58, s54, 6")
    a("s_lshl_b32 s59, s56, 5")
    a("s_add_u32 s58, s58, s59")
    a("v_add_u32 v10, s58, v10")
    a("v_mul_u32_u24 v10, 1792, v10")
    a(f"v_lshrrev_b32 v11, 5, v{V_LANE}")
    a("v_lshl_add_u32 v10, v11, 4, v10")
    a("s_lshl_b32 s58, s55, 7")
    a("s_lshl_b32 s59, s57, 6")
    a("s_add_u32 s58, s58, s59")
    a("s_add_u32 s58, s58, 896")
    a(f"v_permlane32_swap_b32 v{P}, v{P+2}")
    a(f"v_permlane32_swap_b32 v{P+1}, v{P+3}")
    a(f"v_permlane32_swap_b32 v{P+4}, v{P+6}")
    a(f"v_permlane32_swap_b32 v{P+5}, v{P+7}")
    a("s_nop 1")
    a(f"buffer_store_dwordx4 v[{P}:{P+3}], v10, {srd(S_OUT)}, s58 offen")
    a(f"buffer_store_dwordx4 v[{P+4}:{P+7}], v10, {srd(S_OUT)}, s58 offen offset:32")
    a(f"s_branch {Lend}")
    a.label(Lpost)
    a(f"s_sub_u32 s56, s{S_WAVE}, 4")
    a("s_lshl_b32 s57, s55, 5")
    a(f"v_and_b32 v2, 31, v{V_LANE}")
    a("v_add_u32 v2, s57, v2")
    a("v_lshlrev_b32 v2, 4, v2")
    a(f"v_add_u32 v2, {FL_C}, v2")
    a(f"v_lshrrev_b32 v10, 3, v{V_LANE}")
    a("s_lshl_b32 s58, s54, 6")
    a("s_lshl_b32 s59, s56, 4")
    a("s_add_u32 s58, s58, s59")
    a("v_add_u32 v10, s58, v10")
    a(f"v_and_b32 v11, 7, v{V_LANE}")
    a("v_lshlrev_b32 v11, 4, v11")
    a("s_lshl_b32 s58, s55, 7")
    a("v_add_u32 v11, s58, v11")
    a("v_mul_u32_u24 v12, 896, v10")
    a("v_add_u32 v12, v12, v11")
    a(f"buffer_load_dwordx4 v[16:19], v12, {srd(S_AQ)}, 0 offen{NT}")
    a(f"v_add_u32 v12, {8*896}, v12")
    a(f"buffer_load_dwordx4 v[20:23], v12, {srd(S_AQ)}, 0 offen{NT}")
    a("v_mul_u32_u24 v13, 1792, v10")
    a("v_add_u32 v13, v13, v11")
    poll(a, 2)
    a(f"v_lshrrev_b32 v4, 1, v{V_LANE}")
    a(f"v_and_b32 v3, 1, v{V_LANE}")
    a("v_lshlrev_b32 v3, 4, v3")
    a("v_lshl_add_u32 v6, v4, 12, v3")
    a("s_lshl_b32 s57, s55, 18")
    a("s_lshl_b32 s58, s54, 7")
    a("s_add_u32 s57, s57, s58")
    a("s_lshl_b32 s58, s56, 5")
    a("s_add_u32 s57, s57, s58")
    a(f"s_add_u32 s57, s57, {WS_Z}")
    a("s_lshl_b32 s58, s56, 11")
    a(f"s_add_u32 m0, s58, {L3_Z}")
    a("s_nop 0")
    a(f"buffer_load_dwordx4 v6, {srd(S_WS)}, s57 offen{SC1} lds")
    a(f"s_add_u32 m0, s58, {L3_Z + 1024}")
    a(f"s_add_u32 s57, s57, {32*4096}")
    a(f"buffer_load_dwordx4 v6, {srd(S_WS)}, s57 offen{SC1} lds")
    a(f"v_lshrrev_b32 v14, 4, v{V_LANE}")
    a(f"v_bfe_u32 v15, v{V_LANE}, 2, 2")
    a("v_lshl_add_u32 v14, v14, 3, v15")
    a("v_lshlrev_b32 v14, 5, v14")
    a(f"v_and_b32 v24, 3, v{V_LANE}")
    a("v_lshl_add_u32 v14, v24, 3, v14")
    a(f"s_add_u32 s58, s58, {L3_Z}")
    a("v_add_u32 v14, s58, v14")
    a(f"v_and_b32 v24, 15, v{V_LANE}")
    a(f"v_lshrrev_b32 v25, 4, v{V_LANE}")
    a("v_and_b32 v26, 7, v24")
    a("v_xor_b32 v25, v25, v26")
    a("v_xor_b32 v26, 4, v25")
    a("s_lshl_b32 s58, s56, 11")
    a(f"s_add_u32 s58, s58, {L3_B}")
    a("v_lshlrev_b32 v24, 7, v24")
    a("v_add_u32 v24, s58, v24")
    a("v_lshl_add_u32 v25, v25, 4, v24")
    a("v_lshl_add_u32 v26, v26, 4, v24")
    a(f"v_lshrrev_b32 v27, 3, v{V_LANE}")
    a(f"v_and_b32 v28, 7, v{V_LANE}")
    a("v_xor_b32 v28, v28, v27")
    a("v_lshlrev_b32 v28, 4, v28")
    a("v_lshl_add_u32 v28, v27, 7, v28")
    a("v_add_u32 v28, s58, v28")
    a("s_waitcnt vmcnt(0)")
    for u in range(2):
        for jj in range(2):
            a(f"ds_read_b64_tr_b16 v[{32+4*u+2*jj}:{33+4*u+2*jj}], v14 offset:{(32*u + 4*jj)*32}")
    a("s_waitcnt lgkmcnt(0)")
    a("ds_write_b128 v25, v[32:35]")
    a("ds_write_b128 v26, v[36:39]")
    a("s_waitcnt lgkmcnt(0)")
    a("ds_read_b128 v[40:43], v28")
    a("ds_read_b128 v[44:47], v28 offset:1024")
    a("s_waitcnt lgkmcnt(0)")
    for n in range(2):
        Z, Q = 40 + 4*n, 16 + 4*n
        for r in range(4):
            a(f"v_lshlrev_b32 v48, 16, v{Z+r}")
            a(f"v_and_b32 v49, 0xffff0000, v{Z+r}")
            a(f"v_lshlrev_b32 v50, 16, v{Q+r}")
            a(f"v_and_b32 v51, 0xffff0000, v{Q+r}")
            a("v_mul_f32 v48, v48, v50")
            a("v_mul_f32 v49, v49, v51")
            a(f"v_cvt_pk_bf16_f32 v{52+4*n+r}, v48, v49")
    a(f"buffer_store_dwordx4 v[52:55], v13, {srd(S_OUT)}, 0 offen")
    a(f"v_add_u32 v13, {8*1792}, v13")
    a(f"buffer_store_dwordx4 v[56:59], v13, {srd(S_OUT)}, 0 offen")
    a("s_barrier")
    a.label(Lend)

def finale(a):
    L = lab("fin")
    a("s_cmp_lg_u32 s2, 255")
    a(f"s_cbranch_scc1 {L}")
    a(f"s_cmp_lg_u32 s{S_WAVE}, 0")
    a(f"s_cbranch_scc1 {L}")
    for q in range(4):
        a(f"v_lshlrev_b32 v2, 4, v{V_LANE}")
        a(f"v_add_u32 v2, {FL_B + q*1024}, v2")
        poll(a, 2)
    a(f"s_add_u32 s94, s{S_NRAW}, 1")
    a("v_mov_b32 v250, s94")
    a(f"v_mov_b32 v251, {FL_N}")
    a("s_mov_b64 exec, 1")
    a(f"buffer_store_dword v250, v251, {srd(S_WS)}, 0 offen sc1")
    a("s_mov_b64 exec, -1")
    a.label(L)

def kernel_text(name):
    a = Asm()
    G.uid = 0
    ex = "L_exit"
    prologue(a, ex)
    stamp_begin(a)
    stamp(a, 0)
    Lh = (lab("cvh"), lab("cvhs")); Lg = (lab("cvg"), lab("cvgs"))
    phase1(a, Lh, Lg)
    conv_phase(a, Lh, Lg)
    attention(a)
    phase3(a)
    finale(a)
    if STAMP_ON:
        a("s_waitcnt vmcnt(0)")
        stamp_flush(a)
    a.label(ex)
    a("s_endpgm")
    a.label("L_code_end")
    return a.text()
```

```python
import os, struct
from asmlib import *
S = 2048; D = 448; H = 16; DH = 28
WS_Q  = 0x000000; WS_KV = 0x200000; WS_U  = 0x600000; WS_Z  = 0x800000; WS_O  = 0xA00000
WS_STAMP = 0xC00000
WS_FLAG = 0xD00000
FL_A, FL_B, FL_C, FL_D, FL_N = [WS_FLAG + 0x1000*i for i in range(5)]
WS_SIZE = 0xE00000
S_WS, S_X, S_WQKV, S_AK, S_AV, S_SH, S_AQ, S_SK, S_SD, S_WO, S_OUT, S_DBG = [4 + 4*i for i in range(12)]
SRD_INFO = [(S_AQ, 0, 1835008), (S_AK, 8, 1835008), (S_AV, 16, 1835008), (S_SH, 24, 3584),
    (S_SK, 32, 1835008), (S_SD, 40, 896), (S_X, 48, 1835008), (S_WQKV, 56, 1204224),
    (S_WO, 64, 401408), (S_OUT, 72, 3670016), (S_DBG, 80, 256), (S_WS, 88, WS_SIZE)]
S_WAVE = 3; V_LANE = 1; S_NONCE = 93; S_NRAW = 63
SC1 = " sc1"
NT = os.environ.get("NT", " nt")
QSCALE = float(28 ** -0.5 * 1.4426950408889634)
def f32hex(x): return "0x%08x" % struct.unpack("<I", struct.pack("<f", x))[0]
def srd(b): return f"s[{b}:{b+3}]"
SLOT = 28672; XB = 16384; NSLOT = 3
L1_BOUNCE = NSLOT * SLOT
RING = 0
LC_RED = 65536
HC_PITCH = 4160; HC_CH = 4 * HC_PITCH
LC_HC = 98304
LC_U = LC_HC + 2 * HC_CH
U_PITCH = 4608
LC_END = LC_U + 2 * U_PITCH
LC_U2 = LC_HC + 16384
L3_WO = 98304
LA_COMB = 81920
L3_O = 0; L3_Z = 65536; L3_B = L3_Z + 8192
L_CNT = L3_WO + 57 * 1024
LDS_SIZE = L_CNT + 128
F_ISS, F_RDY, F_DONE = 4, 12, 20

STAMP_ON = False
STAMP_RT = False
NSTAMP = 11
SPIN_MAX = 1 << 16
class G:
    uid = 0
def lab(p):
    G.uid += 1
    return f"L_{p}_{G.uid}"
def stamp(a, idx):
    if not STAMP_ON: return
    a(f"{'s_memrealtime' if STAMP_RT else 's_memtime'} s[{64+2*idx}:{65+2*idx}]")
def stamp_begin(a):
    if not STAMP_ON: return
    for i in range(64, 88): a(f"s_mov_b32 s{i}, 0")
    a("s_memrealtime s[86:87]")
    a("s_waitcnt lgkmcnt(0)")
def stamp_flush(a):
    if not STAMP_ON: return
    if STAMP_RT:
        RW = int(os.environ.get("RTWAVE", "0")); RWG = int(os.environ.get("RTWG", "100"))
        L = lab("rt"); L2 = lab("rt")
        a("s_memrealtime s[96:97]")
        a("s_waitcnt lgkmcnt(0)")
        a(f"s_cmp_lg_u32 s{S_WAVE}, 0")
        a(f"s_cbranch_scc1 {L}")
        a("s_not_b32 s98, s86")
        a("v_mov_b32 v8, s98"); a("v_mov_b32 v9, s96"); a("v_mov_b32 v2, 56"); a("v_mov_b32 v3, 60")
        a("s_mov_b64 exec, 1")
        a(f"buffer_atomic_umax v8, v2, {srd(S_DBG)}, 0 offen")
        a(f"buffer_atomic_umax v9, v3, {srd(S_DBG)}, 0 offen")
        a("s_mov_b64 exec, -1")
        a.label(L)
        a(f"s_cmp_lg_u32 s{S_WAVE}, {RW}")
        a(f"s_cbranch_scc1 {L2}")
        a(f"s_cmp_lg_u32 s2, {RWG}")
        a(f"s_cbranch_scc1 {L2}")
        for i in range(NSTAMP): a(f"v_mov_b32 v{8+i}, s{64+2*i}")
        a("v_mov_b32 v19, s96")
        a("v_mov_b32 v2, 0")
        a("s_mov_b64 exec, 1")
        for g in range(3): a(f"buffer_store_dwordx4 v[{8+4*g}:{11+4*g}], v2, {srd(S_DBG)}, 0 offen offset:{16*g}")
        a("s_mov_b64 exec, -1")
        a.label(L2)
        return
    a("s_memrealtime s[96:97]")
    a("s_waitcnt lgkmcnt(0)")
    a("s_lshl_b32 s98, s2, 3")
    a(f"s_add_u32 s98, s98, s{S_WAVE}")
    a("s_lshl_b32 s98, s98, 6")
    a(f"s_add_u32 s98, s98, {WS_STAMP}")
    for i in range(NSTAMP): a(f"v_mov_b32 v{8+i}, s{64+2*i}")
    a(f"v_mov_b32 v{8+11}, s86")
    a(f"v_mov_b32 v{8+12}, s96")
    a("v_mov_b32 v2, 0")
    a("s_mov_b64 exec, 1")
    for g in range(3): a(f"buffer_store_dwordx4 v[{8+4*g}:{11+4*g}], v2, {srd(S_WS)}, s98 offen offset:{16*g}")
    a(f"buffer_store_dword v20, v2, {srd(S_WS)}, s98 offen offset:48")
    a("s_mov_b64 exec, -1")

KARG = {b: 64 + off//4 for (b, off, nb) in SRD_INFO}
def build_srds(a, lst):
    if STAMP_ON: return
    if not getattr(a, "karg_waited", False):
        pass
    a("s_waitcnt lgkmcnt(0)")
    for (b, off, nb) in SRD_INFO:
        if b in lst:
            a(f"s_mov_b32 s{b}, s{KA0 + off//4}")
            a(f"s_mov_b32 s{b+1}, s{KA0 + off//4 + 1}")
            a(f"s_mov_b32 s{b+2}, {nb}")
            a(f"s_mov_b32 s{b+3}, 0x00020000")
KA0 = 64
def prologue(a, exit_label):
    a(f"s_cmp_ge_u32 s2, 256")
    a(f"s_cbranch_scc1 {exit_label}")
    a("s_load_dwordx16 s[64:79], s[0:1], 0")
    a("s_load_dwordx8 s[80:87], s[0:1], 64")
    a("v_lshrrev_b32 v2, 6, v0")
    a(f"v_and_b32 v{V_LANE}, 63, v0")
    a(f"v_readfirstlane_b32 s{S_WAVE}, v2")
    if STAMP_ON:
        a("s_waitcnt lgkmcnt(0)")
        for (b, off, nb) in SRD_INFO:
            a(f"s_mov_b32 s{b}, s{64 + off//4}")
            a(f"s_mov_b32 s{b+1}, s{64 + off//4 + 1}")
            a(f"s_mov_b32 s{b+2}, {nb}")
            a(f"s_mov_b32 s{b+3}, 0x00020000")

def tag_load(a):
    a(f"s_add_u32 s96, s{S_WS}, {FL_N}")
    a(f"s_addc_u32 s97, s{S_WS+1}, 0")
    a(f"s_load_dword s{S_NRAW}, s[96:97], 0")

def code_prefetch(a, lbl="L_pc_here"):
    a("s_getpc_b64 s[96:97]")
    a.label(lbl)
    a(f"v_lshlrev_b32 v244, 7, v{V_LANE}")
    a(f"s_lshl_b32 s58, s{S_WAVE}, 13")
    a("v_add_u32 v244, s58, v244")
    a(f"v_min_u32 v244, L_code_end-{lbl}-4, v244")
    a("global_load_dword v245, v244, s[96:97]")
def code_prefetch2(a): code_prefetch(a, "L_pc_here2")

def nonce_ready(a):
    a(f"s_mul_i32 s{S_NONCE}, s{S_NRAW}, 0x9E3779B1")
    a(f"s_add_u32 s{S_NONCE}, s{S_NONCE}, 0x7F4A7C15")

def signal(a, base, idx_sreg):
    L = lab("sig")
    a(f"s_cmp_lg_u32 s{S_WAVE}, 0")
    a(f"s_cbranch_scc1 {L}")
    a(f"s_lshl_b32 s94, {idx_sreg}, 4")
    a(f"s_add_u32 s94, s94, {base}")
    a(f"v_mov_b32 v250, s{S_NONCE}")
    a("v_mov_b32 v251, 0")
    a("s_mov_b64 exec, 1")
    a(f"buffer_store_dword v250, v251, {srd(S_WS)}, s94 offen sc1")
    a("s_mov_b64 exec, -1")
    a.label(L)

def signal_now(a, base, idx_sreg):
    a(f"s_lshl_b32 s94, {idx_sreg}, 4")
    a(f"s_add_u32 s94, s94, {base}")
    a(f"v_mov_b32 v250, s{S_NONCE}")
    a("v_mov_b32 v251, 0")
    a("s_mov_b64 exec, 1")
    a(f"buffer_store_dword v250, v251, {srd(S_WS)}, s94 offen sc1")
    a("s_mov_b64 exec, -1")

def signal_last(a, cnt, nwaves, base, idx_sreg):
    L = lab("sl")
    a(f"v_mov_b32 v250, {L_CNT + 4*cnt}")
    a("v_mov_b32 v251, 1")
    a("s_mov_b64 exec, 1")
    a("ds_add_rtn_u32 v251, v250, v251")
    a("s_waitcnt lgkmcnt(0)")
    a("s_mov_b64 exec, -1")
    a("v_readfirstlane_b32 s94, v251")
    a("s_nop 3")
    a(f"s_cmp_lg_u32 s94, {nwaves-1}")
    a(f"s_cbranch_scc1 {L}")
    signal_now(a, base, idx_sreg)
    a.label(L)

def lds_spin(a, idx_expr_sreg, target, vtmp=250):
    L = lab("ls"); E = lab("lsx")
    a(f"s_lshl_b32 s94, {idx_expr_sreg}, 2")
    a(f"s_add_u32 s94, s94, {L_CNT}")
    a(f"v_mov_b32 v{vtmp}, s94")
    a("s_mov_b32 s96, 0")
    a.label(L)
    a(f"ds_read_b32 v{vtmp+1}, v{vtmp}")
    a("s_add_u32 s96, s96, 1")
    a("s_waitcnt lgkmcnt(0)")
    a(f"v_readfirstlane_b32 s94, v{vtmp+1}")
    a(f"s_cmp_gt_u32 s96, {1 << 20}")
    a(f"s_cbranch_scc1 {E}")
    a(f"s_cmp_lt_u32 s94, {target}")
    a(f"s_cbranch_scc1 {L}")
    a.label(E)

def lds_add1(a, idx_expr_sreg, vtmp=250):
    if isinstance(idx_expr_sreg, int):
        a(f"v_mov_b32 v{vtmp}, {L_CNT + 4*idx_expr_sreg}")
    else:
        a(f"s_lshl_b32 s94, {idx_expr_sreg}, 2")
        a(f"s_add_u32 s94, s94, {L_CNT}")
        a(f"v_mov_b32 v{vtmp}, s94")
    a(f"v_mov_b32 v{vtmp+1}, 1")
    a("s_mov_b64 exec, 1")
    a(f"ds_add_u32 v{vtmp}, v{vtmp+1}")
    a("s_mov_b64 exec, -1")

def poll(a, vaddr):
    L = lab("poll"); E = lab("pollx")
    a("s_mov_b32 s94, 0")
    a.label(L)
    a(f"buffer_load_dword v249, v{vaddr}, {srd(S_WS)}, 0 offen sc1")
    a("s_add_u32 s94, s94, 1")
    a(f"s_cmp_gt_u32 s94, {SPIN_MAX}")
    a("s_waitcnt vmcnt(0)")
    a(f"s_cbranch_scc1 {E}")
    a(f"v_cmp_ne_u32 vcc, s{S_NONCE}, v249")
    a(f"s_cbranch_vccnz {L}")
    a.label(E)

def prepass_compute(a, R, lds_off, T=184, SH=128, VWR=114):
    for e in range(8):
        sel = "s88" if e % 2 == 0 else "s89"
        r = e // 2
        a(f"v_perm_b32 v{T+e}, v{R+4+r}, v{R+r}, {sel}")
        a(f"v_perm_b32 v{T+8+e}, v{R+12+r}, v{R+8+r}, {sel}")
    for e in range(8): a(f"v_dot2_f32_bf16 v{T+16+e}, v{T+e}, v{SH+2*e}, 0")
    for e in range(8): a(f"v_dot2_f32_bf16 v{T+16+e}, v{T+8+e}, v{SH+1+2*e}, v{T+16+e}")
    for e in range(8):
        r = e // 2
        if e % 2 == 0: a(f"v_lshlrev_b32 v{T+e}, 16, v{R+16+r}")
        else: a(f"v_and_b32 v{T+e}, 0xffff0000, v{R+16+r}")
    for e in range(8): a(f"v_mul_f32 v{T+16+e}, v{T+16+e}, v{T+e}")
    for r in range(4): a(f"v_cvt_pk_bf16_f32 v{T+24+r}, v{T+16+2*r}, v{T+17+2*r}")
    a(f"ds_write_b128 v{VWR}, v[{T+24}:{T+27}] offset:{lds_off}")

def phase1(a, Lconv_h, Lconv_g):
    a("s_and_b32 s52, s2, 7")
    a("s_lshr_b32 s53, s2, 3")
    a("s_lshr_b32 s54, s52, 1")
    a("s_lshl_b32 s54, s54, 2")
    a("s_and_b32 s55, s53, 3")
    a("s_add_u32 s54, s54, s55")
    a("s_and_b32 s55, s52, 1")
    a("s_lshl_b32 s55, s55, 3")
    a("s_lshr_b32 s56, s53, 2")
    a("s_add_u32 s55, s55, s56")
    Lg = lab("gemmw")
    a(f"s_cmp_lt_u32 s{S_WAVE}, 4")
    a(f"s_cbranch_scc1 {Lg}")
    a(f"s_sub_u32 s58, s{S_WAVE}, 4")
    a(f"v_lshrrev_b32 v50, 3, v{V_LANE}")
    a("v_mul_u32_u24 v50, 896, v50")
    a(f"v_and_b32 v51, 7, v{V_LANE}")
    a(f"v_lshrrev_b32 v52, 4, v{V_LANE}")
    a("v_xor_b32 v51, v51, v52")
    a("v_xor_b32 v52, 4, v51")
    a("v_lshl_add_u32 v51, v51, 4, v50")
    a("v_lshl_add_u32 v52, v52, 4, v50")
    for m in range(3):
        a(f"v_add_u32 v53, {64*m}, v{V_LANE}")
        a("v_mul_u32_u24 v54, 5462, v53")
        a("v_lshrrev_b32 v54, 16, v54")
        a("v_mul_u32_u24 v55, 12, v54")
        a("v_sub_u32 v55, v53, v55")
        a("v_mul_u32_u24 v54, 2688, v54")
        a(f"v_lshl_add_u32 v{56+m}, v55, 4, v54")
    a("s_lshl_b32 s60, s54, 7")
    a("s_lshl_b32 s61, s58, 5")
    a("s_add_u32 s60, s60, s61")
    a("s_mul_i32 s60, s60, 896")
    a("s_mul_i32 s61, s58, 43008")
    a("s_mul_i32 s62, s55, 168")
    a("s_add_u32 s61, s61, s62")
    a("s_lshl_b32 s62, s58, 12")
    a("s_mul_i32 s59, s58, 3072")
    build_srds(a, [S_X, S_WQKV])
    a("s_lshr_b32 s95, s53, 2")
    a("s_and_b32 s92, s53, 3")
    a("s_lshl_b32 s92, s92, 1")
    a("s_add_u32 s95, s95, s92")
    a("s_cmp_ge_u32 s95, 7")
    a("s_cselect_b32 s92, 7, 0")
    a("s_sub_u32 s95, s95, s92")
    a("s_mov_b32 s57, s95")
    def adv(r):
        a(f"s_add_u32 {r}, {r}, 1")
        a(f"s_cmp_eq_u32 {r}, 7")
        a(f"s_cselect_b32 {r}, 0, {r}")
    def dma_x(k):
        slot = (k % NSLOT) * SLOT
        a("s_lshl_b32 s98, s95, 7")
        a("s_add_u32 s98, s98, s60")
        for n in range(4):
            a(f"s_add_u32 m0, s62, {slot + n*1024}")
            a(f"s_add_u32 s92, s98, {n*8*896}")
            a(f"buffer_load_dwordx4 v{51 + (n & 1)}, {srd(S_X)}, s92 offen{NT} lds")
        adv("s95")
    def dma_w(k):
        slot = (k % NSLOT) * SLOT
        a(f"s_mul_i32 s92, s57, {64*2688}")
        a("s_add_u32 s92, s92, s61")
        for m in range(3):
            a(f"s_add_u32 m0, s59, {slot + XB + m*1024}")
            a("s_nop 0")
            a(f"buffer_load_dwordx4 v{56+m}, {srd(S_WQKV)}, s92 offen{NT} lds")
        adv("s57")
    stamp(a, 5)
    dma_x(0)
    stamp(a, 6)
    dma_w(0); dma_x(1)
    stamp(a, 2)
    a("s_barrier")
    stamp(a, 1)
    if os.environ.get("X0LAT"):
        a("s_waitcnt vmcnt(7)")
        stamp(a, 3)
    for k in range(7):
        a(f"s_waitcnt vmcnt({4 if k < 6 else 0})")
        lds_add1(a, F_RDY + k)
        if k == 0: stamp(a, 8)
        if k + 1 <= 6: dma_w(k + 1)
        if k + 2 <= 6:
            if k + 2 >= NSLOT:
                a(f"s_movk_i32 s88, {F_DONE + k + 2 - NSLOT}")
                lds_spin(a, "s88", 4)
            dma_x(k + 2)
        elif k == 5:
            pass
    build_srds(a, [S_WS, S_SK])
    tag_load(a)
    HS = [S_AK, S_AV]
    a("s_lshl_b32 s90, s2, 1")
    a("s_cmp_ge_u32 s2, 224")
    a("s_cselect_b32 s90, 0, s90")
    a("s_lshl_b32 s90, s90, 12")
    a("s_lshl_b32 s88, s58, 6")
    a(f"v_add_u32 v2, s88, v{V_LANE}")
    a("v_lshlrev_b32 v3, 4, v2")
    a("v_subrev_u32 v4, 16, v3")
    a("v_cmp_eq_u32 vcc, 0, v2")
    a("v_mov_b32 v5, 0x80000000")
    a("s_nop 0")
    a("v_cndmask_b32 v4, v4, v5, vcc")
    a(f"v_cmp_eq_u32 vcc, 0, v{V_LANE}")
    a("v_mov_b32 v6, 4080")
    a("s_nop 0")
    a("v_cndmask_b32 v6, v5, v6, vcc")
    for ch in range(2):
        a(f"s_add_u32 s{HS[ch]}, s{S_SK}, s90")
        a(f"s_addc_u32 s{HS[ch]+1}, s{S_SK+1}, 0")
        a(f"s_movk_i32 s{HS[ch]+2}, 4096")
        a(f"s_mov_b32 s{HS[ch]+3}, 0x00020000")
        a("s_add_u32 s90, s90, 4096")
        D0 = 8 + 12*ch
        a(f"buffer_load_dwordx4 v[{D0}:{D0+3}], v4, {srd(HS[ch])}, 0 offen{NT}")
        a(f"buffer_load_dwordx4 v[{D0+4}:{D0+7}], v3, {srd(HS[ch])}, 0 offen{NT}")
        a(f"buffer_load_dwordx4 v[{D0+8}:{D0+11}], v6, {srd(HS[ch])}, 0 offen{NT}")
    a("s_waitcnt lgkmcnt(0)")
    nonce_ready(a)
    build_srds(a, [S_SD, S_WO, S_AQ, S_OUT])
    attn_map(a)
    a("s_cmp_ge_u32 s2, 224")
    a(f"s_cbranch_scc1 {Lconv_h[1]}")
    a("s_waitcnt vmcnt(0)")
    a(f"v_cmp_eq_u32 vcc, 0, v{V_LANE}")
    a("v_mov_b32 v7, 4112")
    a("v_add_u32 v3, 16, v3")
    a("v_cndmask_b32 v7, 0, v7, vcc")
    def emit(Dr, dst, base):
        for j in range(4): a(f"v_alignbit_b32 v{36+j}, v{Dr+j+1}, v{Dr+j}, 16")
        for j in range(4): a(f"v_alignbit_b32 v{40+j}, v{Dr+j+2}, v{Dr+j+1}, 16")
        for j in range(4): a(f"v_mov_b32 v{44+j}, v{Dr+j+1}")
        a(f"ds_write_b128 v{dst}, v[36:39] offset:{base}")
        a(f"ds_write_b128 v{dst}, v[44:47] offset:{base+HC_PITCH}")
        a(f"ds_write_b128 v{dst}, v[40:43] offset:{base+2*HC_PITCH}")
        a(f"ds_write_b128 v{dst}, v[{Dr+2}:{Dr+5}] offset:{base+3*HC_PITCH}")
        a("s_waitcnt lgkmcnt(0)")
    a(f"v_add_u32 v3, {LC_HC}, v3")
    a(f"v_add_u32 v7, {LC_HC}, v7")
    for ch in range(2): emit(8 + 12*ch, 3, ch*HC_CH)
    Lnt = lab("notail")
    a("s_cmp_eq_u32 s58, 3")
    a(f"s_cbranch_scc0 {Lnt}")
    for ch in range(2):
        D0 = 8 + 12*ch + 8
        for j in range(4): a(f"v_mov_b32 v{60+j}, v{D0+j}")
        for j in range(4): a(f"v_mov_b32 v{64+j}, 0")
        emit(60, 7, ch*HC_CH)
    a.label(Lnt)
    stamp(a, 4)
    a(f"s_branch {Lconv_h[0]}")
    a.label(Lg)
    a(f"v_lshlrev_b32 v2, 2, v{V_LANE}")
    a(f"v_add_u32 v2, {L_CNT}, v2")
    a("v_mov_b32 v3, 0")
    a("s_mov_b64 exec, 0xffffffff")
    a("ds_write_b32 v2, v3")
    a("s_mov_b64 exec, -1")
    Lnp = lab("nopre")
    build_srds(a, [S_AK, S_AV, S_SH, S_WS])
    tag_load(a)
    a("s_cmp_ge_u32 s2, 224")
    a(f"s_cbranch_scc1 {Lnp}")
    a("s_mul_i32 s56, s2, 9363")
    a("s_lshr_b32 s56, s56, 16")
    a("s_mul_i32 s88, s56, 7")
    a("s_sub_u32 s57, s2, s88")
    a(f"v_lshrrev_b32 v2, 3, v{V_LANE}")
    a(f"v_and_b32 v3, 7, v{V_LANE}")
    a("s_lshl_b32 s88, s56, 6")
    a(f"s_lshl_b32 s89, s{S_WAVE}, 4")
    a("s_add_u32 s88, s88, s89")
    a("v_add_u32 v4, s88, v2")
    a("v_mul_u32_u24 v5, 896, v4")
    a("v_lshlrev_b32 v6, 4, v3")
    a("s_lshl_b32 s89, s57, 7")
    a("v_add3_u32 v5, v5, v6, s89")
    a(f"v_subrev_u32 v7, {3*896}, v5")
    a("v_cmp_gt_u32 vcc, 3, v4")
    a("v_mov_b32 v10, 0x80000000")
    a(f"s_lshl_b32 s90, s{S_WAVE}, 12")
    a(f"s_add_u32 s90, s90, {LC_HC}")
    a("v_cndmask_b32 v8, v7, v10, vcc")
    a("s_mov_b32 m0, s90")
    a(f"v_lshlrev_b32 v9, 4, v{V_LANE}")
    a(f"buffer_load_dwordx4 v8, {srd(S_AK)}, 0 offen{NT} lds")
    a("s_add_u32 m0, s90, 1024")
    a(f"v_add_u32 v11, {8*896}, v7")
    a(f"buffer_load_dwordx4 v11, {srd(S_AK)}, 0 offen{NT} lds")
    a("s_add_u32 m0, s90, 2048")
    a(f"v_add_u32 v11, {16*896}, v7")
    a(f"buffer_load_dwordx4 v11, {srd(S_AK)}, 0 offen{NT} lds")
    a("s_add_u32 m0, s90, 3072")
    a("s_lshl_b32 s89, s57, 9")
    a(f"buffer_load_dwordx4 v9, {srd(S_SH)}, s89 offen{NT} lds")
    a(f"buffer_load_dwordx4 v[120:123], v5, {srd(S_AV)}, 0 offen{NT}")
    a(f"s_movk_i32 s89, {8*896}")
    a(f"buffer_load_dwordx4 v[124:127], v5, {srd(S_AV)}, s89 offen{NT}")
    a.label(Lnp)
    if os.environ.get("TLBW", "1") == "1":
        build_srds(a, [S_SK, S_WO, S_AQ, S_OUT])
        a(f"v_lshlrev_b32 v244, 21, v{V_LANE}")
        a(f"v_min_u32 v244, {0xC00000}, v244")
        a(f"s_cmp_eq_u32 s{S_WAVE}, 0")
        Lt1 = lab("tw"); Lt2 = lab("tw"); Lt3 = lab("tw"); Lt4 = lab("tw")
        a(f"s_cbranch_scc0 {Lt1}")
        a(f"buffer_load_dword v245, v244, {srd(S_WS)}, 0 offen")
        a.label(Lt1)
        a(f"s_cmp_eq_u32 s{S_WAVE}, 1")
        a(f"s_cbranch_scc0 {Lt2}")
        a("v_min_u32 v244, 0x200000, v244")
        a(f"buffer_load_dword v245, v244, {srd(S_OUT)}, 0 offen")
        a.label(Lt2)
        a(f"s_cmp_eq_u32 s{S_WAVE}, 2")
        a(f"s_cbranch_scc0 {Lt3}")
        a("v_mov_b32 v244, 0")
        a(f"buffer_load_dword v245, v244, {srd(S_SK)}, 0 offen")
        a(f"buffer_load_dword v246, v244, {srd(S_WO)}, 0 offen")
        a.label(Lt3)
        a(f"s_cmp_eq_u32 s{S_WAVE}, 3")
        a(f"s_cbranch_scc0 {Lt4}")
        a("v_mov_b32 v244, 0")
        a(f"buffer_load_dword v245, v244, {srd(S_AQ)}, 0 offen")
        a.label(Lt4)
    if os.environ.get("CODEPF", "1") == "1":
        Lcp = lab("nocp")
        a("s_cmp_lt_u32 s2, 248")
        a(f"s_cbranch_scc1 {Lcp}")
        code_prefetch(a)
        a.label(Lcp)
    a("s_waitcnt lgkmcnt(0)")
    a("s_barrier")
    def pre_compute():
        Lsk = lab("nopre2")
        a("s_cmp_ge_u32 s2, 224")
        a(f"s_cbranch_scc1 {Lsk}")
        a(f"s_lshl_b32 s90, s{S_WAVE}, 12")
        a(f"s_add_u32 s90, s90, {LC_HC}")
        a(f"v_lshlrev_b32 v112, 4, v{V_LANE}")
        a("v_add_u32 v112, s90, v112")
        a(f"v_and_b32 v116, 7, v{V_LANE}")
        a("v_lshlrev_b32 v113, 6, v116")
        a("s_add_u32 s89, s90, 3072")
        a("v_add_u32 v113, s89, v113")
        a("s_waitcnt vmcnt(0)")
        for i in range(4): a(f"ds_read_b128 v[{128+4*i}:{131+4*i}], v113 offset:{16*i}")
        K0 = [144, 164]
        for g in range(2):
            R = K0[g]
            for j in range(4): a(f"ds_read_b128 v[{R+4*j}:{R+4*j+3}], v112 offset:{(8*g + 3 - j)*128}")
            for r in range(4): a(f"v_mov_b32 v{R+16+r}, v{120+4*g+r}")
        a(f"v_lshrrev_b32 v117, 3, v{V_LANE}")
        a("v_lshrrev_b32 v114, 1, v117")
        a("v_and_b32 v114, 1, v114")
        a("v_lshlrev_b32 v114, 2, v114")
        a("v_xor_b32 v114, v114, v116")
        a("v_lshlrev_b32 v114, 4, v114")
        a("v_lshl_add_u32 v114, v117, 7, v114")
        a(f"s_lshl_b32 s89, s{S_WAVE}, 11")
        a(f"s_add_u32 s89, s89, {L1_BOUNCE}")
        a("v_add_u32 v114, s89, v114")
        a(f"v_bfe_u32 v118, v{V_LANE}, 2, 2")
        a("v_sub_u32 v118, 3, v118")
        a(f"v_lshrrev_b32 v115, 4, v{V_LANE}")
        a("v_lshlrev_b32 v115, 1, v115")
        a(f"v_bfe_u32 v119, v{V_LANE}, 1, 1")
        a("v_add_u32 v115, v115, v119")
        a("v_lshrrev_b32 v119, 1, v118")
        a("v_lshlrev_b32 v119, 2, v119")
        a("v_xor_b32 v115, v115, v119")
        a("v_lshlrev_b32 v115, 4, v115")
        a(f"v_and_b32 v119, 1, v{V_LANE}")
        a("v_lshl_add_u32 v115, v119, 3, v115")
        a("v_lshl_add_u32 v115, v118, 7, v115")
        a("v_add_u32 v115, s89, v115")
        a("s_mov_b32 s88, 0x05040100")
        a("s_mov_b32 s89, 0x07060302")
        a("s_waitcnt lgkmcnt(4)")
        prepass_compute(a, K0[0], 0)
        a("s_waitcnt lgkmcnt(1)")
        prepass_compute(a, K0[1], 1024)
        a("s_waitcnt lgkmcnt(0)")
        for i in range(4): a(f"ds_read_b64_tr_b16 v[{184+2*i}:{185+2*i}], v115 offset:{(3-i)*512}")
        a(f"s_lshl_b32 s89, s{S_WAVE}, 1")
        a("s_sub_u32 s89, 6, s89")
        a("v_xor_b32 v118, s89, v116")
        a("v_xor_b32 v119, 1, v118")
        a(f"v_lshlrev_b32 v112, 7, v{V_LANE}")
        a(f"v_add_u32 v112, {LC_U2}, v112")
        a("v_lshl_add_u32 v118, v118, 4, v112")
        a("v_lshl_add_u32 v119, v119, 4, v112")
        a("s_waitcnt lgkmcnt(0)")
        a("ds_write_b128 v118, v[184:187]")
        a("ds_write_b128 v119, v[188:191]")
        a("s_waitcnt lgkmcnt(0)")
        lds_add1(a, 3)
        a("v_xor_b32 v118, v116, v117")
        a(f"s_lshl_b32 s89, s{S_WAVE}, 11")
        a(f"s_add_u32 s89, s89, {LC_U2}")
        a("v_lshlrev_b32 v112, 7, v117")
        a("v_lshl_add_u32 v118, v118, 4, v112")
        a("v_add_u32 v118, s89, v118")
        a("s_lshl_b32 s89, s57, 6")
        a(f"s_lshl_b32 s90, s{S_WAVE}, 4")
        a("s_add_u32 s89, s89, s90")
        a("v_add_u32 v119, s89, v117")
        a("v_lshlrev_b32 v119, 12, v119")
        a("v_lshl_add_u32 v119, v116, 4, v119")
        a("s_lshl_b32 s89, s56, 7")
        a(f"s_sub_u32 s91, {WS_U + 2*1984}, s89")
        a(f"s_add_u32 s90, s91, {8*4096}")
        a("s_movk_i32 s59, 3")
        lds_spin(a, "s59", 4)
        a("ds_read_b128 v[184:187], v118")
        a("ds_read_b128 v[188:191], v118 offset:1024")
        a("s_waitcnt lgkmcnt(0)")
        a(f"buffer_store_dwordx4 v[184:187], v119, {srd(S_WS)}, s91 offen{SC1}")
        a(f"buffer_store_dwordx4 v[188:191], v119, {srd(S_WS)}, s90 offen{SC1}")
        a.label(Lsk)
    ACC = 64; XF = [8, 12]; WF = [16, 28]; VX = 40; VW = 44
    a(f"v_and_b32 v2, 31, v{V_LANE}")
    a(f"v_lshrrev_b32 v3, 5, v{V_LANE}")
    a("v_bfe_u32 v4, v2, 1, 3")
    a(f"s_lshl_b32 s58, s{S_WAVE}, 12")
    a("v_lshlrev_b32 v5, 7, v2")
    a("v_add_u32 v5, s58, v5")
    for ks in range(4):
        a(f"v_add_u32 v6, {2*ks}, v3")
        a("v_xor_b32 v6, v6, v4")
        a(f"v_lshl_add_u32 v{VX+ks}, v6, 4, v5")
    a(f"v_bfe_u32 v6, v{V_LANE}, 2, 2")
    a("v_lshl_add_u32 v6, v3, 3, v6")
    a("v_mul_u32_u24 v6, 192, v6")
    a(f"v_bfe_u32 v7, v{V_LANE}, 4, 1")
    a("v_lshl_add_u32 v6, v7, 5, v6")
    a(f"v_and_b32 v7, 3, v{V_LANE}")
    a("v_lshl_add_u32 v6, v7, 3, v6")
    a(f"v_add_u32 v{VW}, {XB}, v6")
    for i in range(48): a(f"v_mov_b32 v{ACC+i}, 0")
    VX2 = 45; VW2 = 49
    for k_ in range(4): a(f"v_add_u32 v{VX2+k_}, {2*SLOT}, v{VX+k_}")
    a(f"v_add_u32 v{VW2}, {2*SLOT}, v{VW}")
    build_srds(a, [S_SD, S_WO, S_AQ, S_OUT])
    a("s_waitcnt lgkmcnt(0)")
    nonce_ready(a)
    for c in range(7):
        sl = c % NSLOT
        if c == int(os.environ.get("PRE_AT", "3")): pre_compute()
        if c == int(os.environ.get("SIGA_C", "6")):
            La = lab("sigA")
            a("s_waitcnt vmcnt(0)")
            a("s_cmp_ge_u32 s2, 224")
            a(f"s_cbranch_scc1 {La}")
            signal_last(a, 2, 4, FL_A, "s2")
            a.label(La)
        a(f"s_movk_i32 s59, {F_RDY + c}")
        lds_spin(a, "s59", 4)
        if c in (0, 3, 6): stamp(a, {0: 1, 3: 3, 6: 4}[c])
        def rd_(ks, buf):
            vx, vw, so = (VX + ks, VW, sl*SLOT) if sl < 2 else (VX2 + ks, VW2, 0)
            a(f"ds_read_b128 v[{XF[buf]}:{XF[buf]+3}], v{vx} offset:{so}")
            for ft in range(3):
                for jj in range(2):
                    r0 = WF[buf] + 4*ft + 2*jj
                    a(f"ds_read_b64_tr_b16 v[{r0}:{r0+1}], v{vw} offset:{so + ks*3072 + jj*768 + 56*ft}")
        rd_(0, 0)
        for ks in range(4):
            buf = ks & 1
            if ks < 3:
                rd_(ks+1, buf ^ 1)
                a("s_waitcnt lgkmcnt(7)")
            else:
                a("s_waitcnt lgkmcnt(0)")
            if ks == 3 and c <= 3: lds_add1(a, F_DONE + c)
            for ft in range(3):
                w0 = WF[buf] + 4*ft
                a(f"v_mfma_f32_32x32x16_bf16 v[{ACC+16*ft}:{ACC+16*ft+15}], v[{w0}:{w0+3}], v[{XF[buf]}:{XF[buf]+3}], v[{ACC+16*ft}:{ACC+16*ft+15}]")
    a("s_lshl_b32 s58, s54, 2")
    a(f"s_add_u32 s58, s58, s{S_WAVE}")
    a(f"v_cmp_lt_u32 s[90:91], 31, v{V_LANE}")
    a(f"v_lshlrev_b32 v2, 4, v{V_LANE}")
    a(f"s_lshl_b32 s59, s{S_WAVE}, 11")
    a(f"s_add_u32 s59, s59, {L1_BOUNCE}")
    a(f"v_and_b32 v3, 31, v{V_LANE}")
    a("v_lshlrev_b32 v3, 6, v3")
    a(f"v_lshrrev_b32 v4, 5, v{V_LANE}")
    a("v_lshl_add_u32 v3, v4, 3, v3")
    a("v_add_u32 v3, s59, v3")
    a(f"v_bfe_u32 v5, v{V_LANE}, 2, 2")
    a("v_lshl_add_u32 v5, v4, 2, v5")
    a("v_lshlrev_b32 v5, 6, v5")
    a(f"v_bfe_u32 v6, v{V_LANE}, 4, 1")
    a("v_lshl_add_u32 v5, v6, 5, v5")
    a(f"v_and_b32 v6, 3, v{V_LANE}")
    a("v_lshl_add_u32 v5, v6, 3, v5")
    a("v_add_u32 v5, s59, v5")
    a("s_nop 3")
    stamp(a, 5)
    for ft in range(3):
        A0 = ACC + 16*ft; P = 8
        Lv = lab("vt"); Ld = lab("vd"); Lns = lab("nosc")
        a("s_mul_i32 s60, s55, 3")
        a(f"s_add_u32 s60, s60, {ft}")
        a("s_lshr_b32 s61, s60, 4")
        a("s_and_b32 s62, s60, 15")
        a("s_cmp_lg_u32 s61, 0")
        a(f"s_cbranch_scc1 {Lns}")
        a(f"s_mov_b32 s88, {f32hex(QSCALE)}")
        for i in range(16): a(f"v_mul_f32 v{A0+i}, s88, v{A0+i}")
        a.label(Lns)
        for i in range(8): a(f"v_cvt_pk_bf16_f32 v{P+i}, v{A0+2*i}, v{A0+2*i+1}")
        a("s_cmp_eq_u32 s61, 2")
        a("s_cselect_b32 s88, 0x3f80, 0")
        a("v_mov_b32 v16, s88")
        a("v_mov_b32 v17, 0")
        a(f"v_cndmask_b32 v{P+6}, v{P+6}, v16, s[90:91]")
        a(f"v_cndmask_b32 v{P+7}, v{P+7}, v17, s[90:91]")
        a(f"s_cbranch_scc1 {Lv}")
        a("s_cmp_eq_u32 s61, 0")
        a("s_cselect_b32 s88, 11, 12")
        a(f"s_cselect_b32 s89, {WS_Q}, {WS_KV}")
        a("s_lshl_b32 s92, s62, 6")
        a("s_add_u32 s92, s92, s58")
        a("s_lshl_b32 s92, s92, s88")
        a("s_add_u32 s92, s92, s89")
        a(f"buffer_store_dwordx4 v[{P}:{P+3}], v2, {srd(S_WS)}, s92 offen{SC1}")
        a(f"buffer_store_dwordx4 v[{P+4}:{P+7}], v2, {srd(S_WS)}, s92 offen offset:1024{SC1}")
        a(f"s_branch {Ld}")
        a.label(Lv)
        for blk in range(4): a(f"ds_write_b64 v3, v[{P+2*blk}:{P+2*blk+1}] offset:{16*blk}")
        a("s_waitcnt lgkmcnt(0)")
        for t in range(2):
            for jj in range(2):
                a(f"ds_read_b64_tr_b16 v[{20+4*t+2*jj}:{21+4*t+2*jj}], v5 offset:{(16*t+8*jj)*64}")
        a("s_lshl_b32 s92, s62, 6")
        a("s_add_u32 s92, s92, s58")
        a("s_lshl_b32 s92, s92, 12")
        a(f"s_add_u32 s92, s92, {WS_KV + 2048}")
        a("s_waitcnt lgkmcnt(0)")
        a(f"buffer_store_dwordx4 v[20:23], v2, {srd(S_WS)}, s92 offen{SC1}")
        a(f"buffer_store_dwordx4 v[24:27], v2, {srd(S_WS)}, s92 offen offset:1024{SC1}")
        a.label(Ld)
        a("s_nop 1")
    a("s_lshl_b32 s95, s55, 4")
    a("s_add_u32 s95, s95, s54")
    stamp(a, 6)
    attn_map(a)
    a("s_cmp_ge_u32 s2, 224")
    a(f"s_cbranch_scc1 {Lconv_g[1]}")
    a(f"s_branch {Lconv_g[0]}")

def attn_map(a):
    a("s_and_b32 s52, s2, 7")
    a("s_lshr_b32 s53, s2, 3")
    a("s_and_b32 s54, s53, 1")
    a("s_lshl_b32 s52, s52, 1")
    a("s_add_u32 s52, s52, s54")
    a("s_lshr_b32 s53, s53, 1")

def poll_B_addr(a, v):
    a("s_add_u32 s88, s52, 16")
    a("s_mul_i32 s88, s88, 21846")
    a("s_lshr_b32 s88, s88, 16")
    a("s_add_u32 s89, s52, 32")
    a("s_mul_i32 s89, s89, 21846")
    a("s_lshr_b32 s89, s89, 16")
    a("s_mul_i32 s90, s52, 21846")
    a("s_lshr_b32 s90, s90, 16")
    a("s_lshl_b32 s90, s90, 4")
    a("s_add_u32 s90, s90, s53")
    a("s_lshl_b32 s88, s88, 4")
    a("s_lshl_b32 s89, s89, 4")
    a(f"v_and_b32 v{v}, 15, v{V_LANE}")
    a(f"v_add_u32 v246, s88, v{v}")
    a(f"v_add_u32 v247, s89, v{v}")
    a(f"v_cmp_lt_u32 vcc, 15, v{V_LANE}")
    a(f"v_mov_b32 v248, s90")
    a("s_nop 0")
    a(f"v_cndmask_b32 v{v}, v246, v247, vcc")
    a(f"v_cmp_lt_u32 vcc, 31, v{V_LANE}")
    a("s_nop 1")
    a(f"v_cndmask_b32 v{v}, v{v}, v248, vcc")
    a(f"v_lshlrev_b32 v{v}, 4, v{v}")
    a(f"v_add_u32 v{v}, {FL_B}, v{v}")

QF_REG = 200
def q_prefetch(a):
    a(f"s_and_b32 s88, s{S_WAVE}, 3")
    a("s_lshl_b32 s89, s52, 6")
    a("s_lshl_b32 s90, s53, 2")
    a("s_add_u32 s89, s89, s90")
    a("s_add_u32 s89, s89, s88")
    a("s_lshl_b32 s89, s89, 11")
    a(f"s_add_u32 s89, s89, {WS_Q}")
    a(f"v_lshlrev_b32 v243, 4, v{V_LANE}")
    a(f"buffer_load_dwordx4 v[{QF_REG}:{QF_REG+3}], v243, {srd(S_WS)}, s89 offen{SC1}")
    a(f"buffer_load_dwordx4 v[{QF_REG+4}:{QF_REG+7}], v243, {srd(S_WS)}, s89 offen offset:1024{SC1}")

def conv_phase(a, Lh, Lg):
    Lj2 = lab("cvj2")
    a.label(Lh[0])
    a("s_lshr_b32 s88, s2, 5")
    a(f"v_and_b32 v2, 31, v{V_LANE}")
    a("v_mul_u32_u24 v2, 7, v2")
    a("v_add_u32 v2, s88, v2")
    a("v_lshlrev_b32 v2, 4, v2")
    a(f"v_add_u32 v2, {FL_A}, v2")
    poll(a, 2)
    stamp(a, 7)
    a(f"s_sub_u32 s55, s{S_WAVE}, 4")
    a(f"v_lshlrev_b32 v2, 4, v{V_LANE}")
    a("s_lshl_b32 s61, s55, 10")
    a("s_lshl_b32 s62, s2, 13")
    a("s_add_u32 s62, s62, s61")
    a(f"s_add_u32 s62, s62, {WS_U}")
    for ch in range(2):
        a(f"s_add_u32 m0, s61, {LC_U + ch*U_PITCH}")
        a(f"s_add_u32 s60, s62, {ch*4096}")
        a(f"buffer_load_dwordx4 v2, {srd(S_WS)}, s60 offen{SC1} lds")
    Lp = lab("nopad")
    a("s_cmp_lt_u32 s55, 2")
    a(f"s_cbranch_scc0 {Lp}")
    a(f"v_and_b32 v3, 31, v{V_LANE}")
    a("v_lshlrev_b32 v3, 4, v3")
    a(f"s_mul_i32 s60, s55, {U_PITCH}")
    a(f"s_add_u32 s60, s60, {LC_U + 4096}")
    a("v_add_u32 v3, s60, v3")
    for j in range(4): a(f"v_mov_b32 v{8+j}, 0")
    a("ds_write_b128 v3, v[8:11]")
    a.label(Lp)
    a("s_waitcnt vmcnt(0) lgkmcnt(0)")
    a("s_barrier")
    kv_prefetch(a, first=True)
    a("s_barrier")
    q_prefetch(a)
    a(f"s_branch {Lj2}")
    a.label(Lh[1])
    kv_prefetch(a, first=False)
    a("s_barrier")
    q_prefetch(a)
    a(f"s_branch {Lj2}")
    a.label(Lg[1])
    a("s_waitcnt vmcnt(0)")
    signal_last(a, 0, 4, FL_B, "s95")
    a("s_barrier")
    q_prefetch(a)
    a("s_waitcnt vmcnt(0)")
    a(f"s_branch {Lj2}")
    a.label(Lg[0])
    a(f"s_lshr_b32 s54, s{S_WAVE}, 1")
    a(f"s_and_b32 s55, s{S_WAVE}, 1")
    a("s_lshl_b32 s56, s2, 1")
    a("s_add_u32 s56, s56, s54")
    a("s_lshl_b32 s57, s2, 2")
    a(f"s_load_dword s60, s[{S_SD}:{S_SD+1}], s57")
    VA, VB = 2, 3
    a(f"v_lshrrev_b32 v4, 4, v{V_LANE}")
    a(f"v_bfe_u32 v5, v{V_LANE}, 2, 2")
    a(f"v_and_b32 v6, 3, v{V_LANE}")
    a(f"v_mul_u32_u24 v5, {HC_PITCH}, v5")
    a("v_lshl_add_u32 v5, v4, 4, v5")
    a("v_lshl_add_u32 v5, v6, 3, v5")
    a(f"s_mul_i32 s61, s54, {HC_CH}")
    a("s_lshl_b32 s62, s55, 8")
    a("s_add_u32 s61, s61, s62")
    a(f"s_add_u32 s61, s61, {LC_HC}")
    a(f"v_add_u32 v{VA}, s61, v5")
    a(f"v_and_b32 v6, 15, v{V_LANE}")
    a("v_lshlrev_b32 v7, 5, v6")
    a("v_lshlrev_b32 v5, 4, v4")
    a("v_sub_u32 v5, v5, v7")
    a(f"s_mul_i32 s61, s54, {U_PITCH}")
    a(f"s_add_u32 s61, s61, {LC_U + 480}")
    a("s_add_u32 s61, s61, s62")
    a(f"v_add_u32 v{VB}, s61, v5")
    ACC = 32; AB = [64, 128]
    for i in range(32): a(f"v_mov_b32 v{ACC+i}, 0")
    def rd_list(k, buf):
        L = []
        for t in range(8):
            for jj in range(2):
                r0 = AB[buf] + 4*t + 2*jj
                L.append(f"ds_read_b64_tr_b16 v[{r0}:{r0+1}], v{VA} offset:{64*(8*t + k) + 8*jj}")
            r0 = AB[buf] + 32 + 4*t
            L.append(f"ds_read_b128 v[{r0}:{r0+3}], v{VB} offset:{64*(-8*t + k + 56)}")
        return L
    a("s_waitcnt lgkmcnt(0)")
    a("s_barrier")
    stamp(a, 7)
    for i, ins in enumerate(rd_list(0, 0)):
        a(ins)
        if i == 11: a("s_waitcnt lgkmcnt(3)")
    for k in range(4):
        buf = k & 1
        a("s_waitcnt lgkmcnt(0)")
        nxt = rd_list(k+1, buf ^ 1) if k < 3 else []
        mf = []
        for t in range(8):
            for n in range(t, 8):
                A_ = AB[buf] + 4*t; B_ = AB[buf] + 32 + 4*(n - t)
                mf.append(f"v_mfma_f32_16x16x32_bf16 v[{ACC+4*n}:{ACC+4*n+3}], v[{A_}:{A_+3}], v[{B_}:{B_+3}], v[{ACC+4*n}:{ACC+4*n+3}]")
        ni = 0
        for i, m in enumerate(mf):
            a(m)
            if i % 3 != 2 and ni < len(nxt):
                a(nxt[ni]); ni += 1
        while ni < len(nxt):
            a(nxt[ni]); ni += 1
        if k == 0:
            a("s_waitcnt vmcnt(0) lgkmcnt(0)")
            signal_last(a, 0, 4, FL_B, "s95")
    a(f"v_lshlrev_b32 v4, 4, v{V_LANE}")
    a(f"s_lshl_b32 s61, s{S_WAVE}, 12")
    a(f"s_add_u32 s61, s61, {LC_RED}")
    a("v_add_u32 v5, s61, v4")
    a(f"s_xor_b32 s62, s{S_WAVE}, 1")
    a("s_lshl_b32 s62, s62, 12")
    a(f"s_add_u32 s62, s62, {LC_RED}")
    a("v_add_u32 v6, s62, v4")
    a("s_nop 1")
    stamp(a, 8)
    Lg1 = lab("g1"); Lg2 = lab("g2")
    a("s_cmp_eq_u32 s55, 0")
    a(f"s_cbranch_scc0 {Lg1}")
    for i in range(4): a(f"ds_write_b128 v5, v[{ACC+16+4*i}:{ACC+16+4*i+3}] offset:{1024*i}")
    a(f"s_branch {Lg2}")
    a.label(Lg1)
    for i in range(4): a(f"ds_write_b128 v5, v[{ACC+4*i}:{ACC+4*i+3}] offset:{1024*i}")
    a("s_waitcnt lgkmcnt(0)")
    for i in range(16): a(f"v_mov_b32 v{ACC+i}, v{ACC+16+i}")
    a.label(Lg2)
    a("s_waitcnt lgkmcnt(0)")
    a("s_barrier")
    q_prefetch(a)
    for i in range(4): a(f"ds_read_b128 v[{64+4*i}:{64+4*i+3}], v6 offset:{1024*i}")
    a(f"v_and_b32 v7, 15, v{V_LANE}")
    a(f"v_lshrrev_b32 v8, 4, v{V_LANE}")
    a("v_lshlrev_b32 v9, 5, v7")
    a("v_lshl_add_u32 v9, v8, 3, v9")
    a(f"s_mul_i32 s61, s54, {U_PITCH}")
    a(f"s_add_u32 s61, s61, {LC_U + 4088 - 3*512}")
    a("s_lshl_b32 s62, s55, 11")
    a("s_sub_u32 s61, s61, s62")
    a("v_sub_u32 v10, s61, v9")
    for i in range(4): a(f"ds_read_b64 v[{80+2*i}:{81+2*i}], v10 offset:{(3-i)*512}")
    a("s_waitcnt lgkmcnt(0)")
    a("s_cmp_eq_u32 s54, 0")
    a("s_cselect_b32 s61, 16, 0")
    a("s_lshl_b32 s60, s60, s61")
    a("s_and_b32 s60, s60, 0xffff0000")
    a("s_lshl_b32 s61, s56, 12")
    a("s_lshl_b32 s62, s55, 11")
    a("s_add_u32 s61, s61, s62")
    a(f"s_add_u32 s61, s61, {WS_Z}")
    for i in range(4):
        Y = ACC + 4*i; Pp = 64 + 4*i; U0 = 80 + 2*i
        for r in range(4): a(f"v_add_f32 v{Y+r}, v{Y+r}, v{Pp+r}")
        a(f"v_and_b32 v12, 0xffff0000, v{U0+1}")
        a(f"v_lshlrev_b32 v13, 16, v{U0+1}")
        a(f"v_and_b32 v14, 0xffff0000, v{U0}")
        a(f"v_lshlrev_b32 v15, 16, v{U0}")
        for r in range(4): a(f"v_fma_f32 v{Y+r}, v{12+r}, s60, v{Y+r}")
        a(f"v_cvt_pk_bf16_f32 v{16+2*i}, v{Y}, v{Y+1}")
        a(f"v_cvt_pk_bf16_f32 v{17+2*i}, v{Y+2}, v{Y+3}")
        a(f"buffer_store_dwordx2 v[{16+2*i}:{17+2*i}], v9, {srd(S_WS)}, s61 offen offset:{512*i}{SC1}")
    a.label(Lj2)
    a(f"s_cmp_lt_u32 s{S_WAVE}, 4")
    Lw = lab("j2w")
    a(f"s_cbranch_scc1 {Lw}")
    a("s_waitcnt vmcnt(0)")
    a.label(Lw)
    a("s_waitcnt lgkmcnt(0)")
    a("s_barrier")
    stamp(a, 9)

def kv_prefetch(a, first):
    poll_B_addr(a, 2)
    poll(a, 2)
    a(f"s_sub_u32 s88, s{S_WAVE}, 4")
    a(f"v_lshlrev_b32 v4, 4, v{V_LANE}")
    a("s_lshl_b32 s89, s52, 18")
    a("s_lshl_b32 s90, s88, 12")
    a("s_add_u32 s89, s89, s90")
    a(f"s_add_u32 s89, s89, {WS_KV}")
    for stg in range(2):
        for kh in range(2):
            a(f"s_add_u32 m0, s90, {stg*32768 + kh*16384}")
            a(f"s_add_u32 s91, s89, {kh*131072 + stg*16384}")
            for n in range(4):
                a(f"buffer_load_dwordx4 v4, {srd(S_WS)}, s91 offen offset:{n*1024}{SC1} lds")

def attention(a):
    a(f"s_and_b32 s54, s{S_WAVE}, 3")
    a(f"s_lshr_b32 s55, s{S_WAVE}, 2")
    QF, CI, S0, S1, P, KF, VF, O = QF_REG, 16, 32, 48, 64, 72, 80, 88
    VC, VN, VL16 = 2, 3, 4
    VWO = 104
    a(f"v_lshlrev_b32 v{VL16}, 4, v{V_LANE}")
    a("s_lshl_b32 s57, s52, 18")
    a("s_lshl_b32 s58, s55, 5")
    a("s_add_u32 s58, s58, s54")
    a("s_lshl_b32 s58, s58, 12")
    a("s_add_u32 s57, s57, s58")
    a(f"s_add_u32 s57, s57, {WS_KV + 2*16384}")
    a(f"s_lshl_b32 s58, s{S_WAVE}, 12")
    a("s_lshr_b32 s88, s2, 3")
    a("s_mul_i32 s89, s88, 9363")
    a("s_lshr_b32 s89, s89, 16")
    a("s_mul_i32 s89, s89, 7")
    a("s_sub_u32 s89, s88, s89")
    a(f"v_and_b32 v5, 7, v{V_LANE}")
    a(f"v_bfe_u32 v6, v{V_LANE}, 4, 1")
    a("v_lshlrev_b32 v6, 2, v6")
    a("v_xor_b32 v5, v5, v6")
    a("v_lshlrev_b32 v5, 4, v5")
    a(f"v_lshrrev_b32 v6, 3, v{V_LANE}")
    a("v_mul_u32_u24 v6, 896, v6")
    a(f"v_add_u32 v{VWO}, v5, v6")
    a(f"s_mul_i32 s62, s{S_WAVE}, {8*896}")
    a("s_lshl_b32 s89, s89, 7")
    a("s_add_u32 s62, s62, s89")
    a(f"s_lshl_b32 s56, s{S_WAVE}, 10")
    a(f"s_add_u32 s56, s56, {L3_WO}")
    for i in range(16):
        a(f"v_mov_b32 v{CI+i}, 0")
        a(f"v_mov_b32 v{O+i}, 0")
    a("s_lshl_b32 s59, s55, 14")
    a(f"v_add_u32 v{VC}, s59, v{VL16}")
    a(f"v_add_u32 v{VN}, 32768, v{VC}")
    a("s_mov_b32 s60, 65536")
    a("s_mov_b32 s61, 0")
    def rd(dst, base, off): a(f"ds_read_b128 v[{dst}:{dst+3}], v{base} offset:{off}")
    def qk1(Sx): a(f"v_mfma_f32_32x32x16_bf16 v[{Sx}:{Sx+15}], v[{KF}:{KF+3}], v[{QF}:{QF+3}], v[{CI}:{CI+15}]")
    def qk2(Sx): a(f"v_mfma_f32_32x32x16_bf16 v[{Sx}:{Sx+15}], v[{KF+4}:{KF+7}], v[{QF+4}:{QF+7}], v[{Sx}:{Sx+15}]")
    def pv(h_): a(f"v_mfma_f32_32x32x16_bf16 v[{O}:{O+15}], v[{VF+4*h_}:{VF+4*h_+3}], v[{P+4*h_}:{P+4*h_+3}], v[{O}:{O+15}]")
    def ex(Sc, lo, hi):
        for e in range(lo, hi): a(f"v_exp_f32 v{Sc+e}, v{Sc+e}")
    def cv(Sc, lo, hi):
        for e in range(lo, hi): a(f"v_cvt_pk_bf16_f32 v{P+e}, v{Sc+2*e}, v{Sc+2*e+1}")
    rd(KF, VC, 0); rd(KF+4, VC, 1024)
    for e in range(4, 8): a(f"v_mov_b32 v{P+e}, 0")
    a("s_waitcnt vmcnt(4) lgkmcnt(0)")
    qk1(S0); qk2(S0)
    rd(KF, VC, 4096)
    rd(VF+4, VC, 2048+1024)
    rd(KF+4, VC, 4096+1024)
    rd(VF, VC, 2048)
    a("s_nop 7")
    stamp(a, 10)
    Lloop = lab("atloop")
    a.raw(".p2align 6")
    a.label(Lloop)
    for i in range(4):
        Sc = S0 if i % 2 == 0 else S1
        Sn = S1 if i % 2 == 0 else S0
        if i == 2:
            a("s_waitcnt vmcnt(0)")
            a("s_barrier")
            Lc = lab("sigC")
            a("s_cmp_lg_u32 s61, 0")
            a(f"s_cbranch_scc1 {Lc}")
            a(f"s_cmp_lg_u32 s{S_WAVE}, 0")
            a(f"s_cbranch_scc1 {Lc}")
            a("s_cmp_ge_u32 s2, 224")
            a(f"s_cbranch_scc1 {Lc}")
            signal_now(a, FL_C, "s2")
            a.label(Lc)
            a("s_add_u32 m0, s58, s60")
            a("s_nop 0")
        def kvp(n): a(f"buffer_load_dwordx4 v{VL16}, {srd(S_WS)}, s57 offen offset:{n*1024}{SC1} lds")
        kb, kt = (VC, i+2) if i < 2 else (VN, i-2)
        vb, vt = (VC, i+1) if i < 3 else (VN, 0)
        a(f"s_setprio {[1,0,3,2][i]}")
        a("s_waitcnt lgkmcnt(2)")
        qk1(Sn)
        rd(KF, kb, kt*4096)
        if i >= 2: kvp(2*(i-2))
        ex(Sc, 0, 4)
        pv(1)
        rd(VF+4, VC, i*4096 + 2048 + 1024)
        ex(Sc, 4, 6)
        cv(Sc, 0, 2)
        ex(Sc, 6, 7)
        a("s_waitcnt lgkmcnt(2)")
        qk2(Sn)
        rd(KF+4, kb, kt*4096 + 1024)
        if i >= 2: kvp(2*(i-2) + 1)
        ex(Sc, 7, 9)
        cv(Sc, 2, 3)
        ex(Sc, 9, 11)
        cv(Sc, 3, 4)
        ex(Sc, 11, 13)
        pv(0)
        rd(VF, vb, vt*4096 + 2048)
        ex(Sc, 13, 16)
        if i == 3:
            Lw = lab("nowo")
            a(f"s_cmp_eq_u32 s{S_WAVE}, 0")
            a("s_cselect_b32 s88, 8, 7")
            a("s_cmp_ge_u32 s2, 224")
            a("s_cselect_b32 s88, 0, s88")
            a("s_cmp_ge_u32 s61, s88")
            a(f"s_cbranch_scc1 {Lw}")
            a("s_mov_b32 m0, s56")
            a("s_add_u32 s56, s56, 8192")
            a(f"buffer_load_dwordx4 v{VWO}, {srd(S_WO)}, s62 offen{NT} lds")
            a(f"s_add_u32 s62, s62, {64*896}")
            a.label(Lw)
        cv(Sc, 4, 8)
    a("s_add_u32 s57, s57, 16384")
    a("s_cmp_ge_u32 s61, 5")
    a("s_cselect_b32 s57, 0x7f000000, s57")
    a("s_add_u32 s60, s60, 32768")
    a("s_cmp_eq_u32 s60, 98304")
    a("s_cselect_b32 s60, 0, s60")
    a(f"v_mov_b32 v{VC}, v{VN}")
    a(f"v_add_u32 v{VN}, 32768, v{VN}")
    a(f"s_add_u32 s88, s59, {98304}")
    a(f"v_add_u32 v5, s88, v{VL16}")
    a(f"v_cmp_eq_u32 vcc, v{VN}, v5")
    a(f"v_add_u32 v6, s59, v{VL16}")
    a("s_add_u32 s61, s61, 1")
    a(f"v_cndmask_b32 v{VN}, v{VN}, v6, vcc")
    a("s_cmp_lt_u32 s61, 8")
    a(f"s_cbranch_scc1 {Lloop}")
    a("s_setprio 0")
    if os.environ.get("TAIL"): stamp(a, 1)
    a("s_waitcnt vmcnt(0) lgkmcnt(0)")
    pv(1)
    a("s_barrier")
    a("s_nop 15")
    a("s_lshl_b32 s62, s54, 12")
    a(f"s_add_u32 s62, s62, {LA_COMB}")
    a(f"v_add_u32 v5, s62, v{VL16}")
    Lc0 = lab("c0"); Lend = lab("atend")
    a("s_cmp_eq_u32 s55, 0")
    a(f"s_cbranch_scc1 {Lc0}")
    for g in range(4): a(f"ds_write_b128 v5, v[{O+4*g}:{O+4*g+3}] offset:{1024*g}")
    a("s_waitcnt lgkmcnt(0)")
    a.label(Lc0)
    a("s_barrier")
    a("s_cmp_eq_u32 s55, 0")
    a(f"s_cbranch_scc0 {Lend}")
    for g in range(4): a(f"ds_read_b128 v[{S0+4*g}:{S0+4*g+3}], v5 offset:{1024*g}")
    a("s_waitcnt lgkmcnt(0)")
    for i in range(16): a(f"v_add_f32 v{O+i}, v{O+i}, v{S0+i}")
    a(f"v_mov_b32 v6, v{O+12}")
    a(f"v_mov_b32 v7, v{O+12}")
    a("s_nop 1")
    a("v_permlane32_swap_b32 v6, v7")
    a("s_nop 1")
    a("v_rcp_f32 v7, v7")
    a("s_nop 0")
    for i in range(16): a(f"v_mul_f32 v{O+i}, v{O+i}, v7")
    for i in range(8): a(f"v_cvt_pk_bf16_f32 v{P+i}, v{O+2*i}, v{O+2*i+1}")
    a(f"v_cmp_lt_u32 vcc, 31, v{V_LANE}")
    a("v_mov_b32 v6, 0")
    a("s_nop 0")
    a(f"v_cndmask_b32 v{P+6}, v{P+6}, v6, vcc")
    a(f"v_cndmask_b32 v{P+7}, v{P+7}, v6, vcc")
    a("s_lshl_b32 s62, s53, 2")
    a("s_add_u32 s62, s62, s54")
    a("s_lshl_b32 s62, s62, 4")
    a("s_add_u32 s62, s62, s52")
    a("s_lshl_b32 s62, s62, 11")
    a(f"s_add_u32 s62, s62, {WS_O}")
    a(f"buffer_store_dwordx4 v[{P}:{P+3}], v{VL16}, {srd(S_WS)}, s62 offen{SC1}")
    a(f"buffer_store_dwordx4 v[{P+4}:{P+7}], v{VL16}, {srd(S_WS)}, s62 offen offset:1024{SC1}")
    a("s_lshl_b32 s58, s53, 4")
    a("s_add_u32 s58, s58, s52")
    if os.environ.get("TAIL"): stamp(a, 2)
    a("s_waitcnt vmcnt(0)")
    if os.environ.get("TAIL"): stamp(a, 3)
    signal_last(a, 1, 4, FL_D, "s58")
    a.label(Lend)
    stamp(a, 10) if False else None

def phase3(a):
    Lend = lab("p3end"); Lpost = lab("post")
    a("s_cmp_ge_u32 s2, 224")
    a(f"s_cbranch_scc1 {Lend}")
    a("s_and_b32 s52, s2, 7")
    a("s_lshr_b32 s53, s2, 3")
    a("s_mul_i32 s54, s53, 9363")
    a("s_lshr_b32 s54, s54, 16")
    a("s_mul_i32 s55, s54, 7")
    a("s_sub_u32 s55, s53, s55")
    a("s_lshl_b32 s52, s52, 2")
    a("s_add_u32 s54, s54, s52")
    a(f"s_cmp_ge_u32 s{S_WAVE}, 4")
    a(f"s_cbranch_scc1 {Lpost}")
    a("s_lshr_b32 s56, s54, 1")
    a("s_lshl_b32 s56, s56, 4")
    a(f"v_and_b32 v2, 15, v{V_LANE}")
    a("v_add_u32 v2, s56, v2")
    a("v_lshlrev_b32 v2, 4, v2")
    a(f"v_add_u32 v2, {FL_D}, v2")
    poll(a, 2)
    if os.environ.get("TAIL"): stamp(a, 4)
    a(f"v_lshlrev_b32 v5, 4, v{V_LANE}")
    a("s_lshl_b32 s57, s54, 16")
    a(f"s_lshl_b32 s58, s{S_WAVE}, 14")
    a("s_add_u32 s57, s57, s58")
    a(f"s_add_u32 s57, s57, {WS_O}")
    for q in range(4):
        a(f"s_add_u32 m0, s58, {L3_O + q*4096}")
        a(f"s_add_u32 s59, s57, {q*4096}")
        for n in range(4): a(f"buffer_load_dwordx4 v5, {srd(S_WS)}, s59 offen offset:{1024*n}{SC1} lds")
    a(f"s_and_b32 s56, s{S_WAVE}, 1")
    a(f"s_lshr_b32 s57, s{S_WAVE}, 1")
    VO, VW = 8, 9
    a("s_lshl_b32 s58, s56, 15")
    a(f"s_add_u32 s58, s58, {L3_O}")
    a(f"v_lshlrev_b32 v{VO}, 4, v{V_LANE}")
    a(f"v_add_u32 v{VO}, s58, v{VO}")
    a(f"v_lshrrev_b32 v10, 5, v{V_LANE}")
    a(f"v_bfe_u32 v11, v{V_LANE}, 2, 2")
    a("v_lshl_add_u32 v10, v10, 2, v11")
    a("v_lshlrev_b32 v10, 7, v10")
    a(f"v_bfe_u32 v12, v{V_LANE}, 4, 1")
    a(f"v_bfe_u32 v13, v{V_LANE}, 1, 1")
    a("v_lshl_add_u32 v12, v12, 1, v13")
    a("s_lshl_b32 s58, s57, 2")
    a("v_add_u32 v12, s58, v12")
    a("v_lshrrev_b32 v11, 1, v11")
    a("v_lshlrev_b32 v11, 2, v11")
    a("v_xor_b32 v12, v12, v11")
    a("v_lshl_add_u32 v10, v12, 4, v10")
    a(f"v_and_b32 v13, 1, v{V_LANE}")
    a(f"v_lshl_add_u32 v{VW}, v13, 3, v10")
    a(f"v_add_u32 v{VW}, {L3_WO}, v{VW}")
    ACC = 16; NB = 4; OB = 32; WB = 48
    for i in range(16): a(f"v_mov_b32 v{ACC+i}, 0")
    def rd(k):
        h, t = k // 2, k % 2
        b = k % NB
        a(f"ds_read_b128 v[{OB+4*b}:{OB+4*b+3}], v{VO} offset:{h*2048 + t*1024}")
        for jj in range(2):
            a(f"ds_read_b64_tr_b16 v[{WB+4*b+2*jj}:{WB+4*b+2*jj+1}], v{VW} offset:{(28*h + 16*t + 8*jj)*128}")
    a("s_waitcnt vmcnt(0)")
    if os.environ.get("TAIL"): stamp(a, 5)
    a("s_barrier")
    for k in range(NB-1): rd(k)
    for k in range(32):
        if k + NB - 1 < 32:
            rd(k + NB - 1)
            a(f"s_waitcnt lgkmcnt({3*(NB-1)})")
        else:
            a(f"s_waitcnt lgkmcnt({3*(31-k)})")
        b = k % NB
        a(f"v_mfma_f32_32x32x16_bf16 v[{ACC}:{ACC+15}], v[{WB+4*b}:{WB+4*b+3}], v[{OB+4*b}:{OB+4*b+3}], v[{ACC}:{ACC+15}]")
    a("s_nop 15")
    if os.environ.get("TAIL"): stamp(a, 6)
    P = 32
    for i in range(8): a(f"v_cvt_pk_bf16_f32 v{P+i}, v{ACC+2*i}, v{ACC+2*i+1}")
    a(f"v_and_b32 v10, 31, v{V_LANE}")
    a("s_lshl_b32 s58, s54, 6")
    a("s_lshl_b32 s59, s56, 5")
    a("s_add_u32 s58, s58, s59")
    a("v_add_u32 v10, s58, v10")
    a("v_mul_u32_u24 v10, 1792, v10")
    a(f"v_lshrrev_b32 v11, 5, v{V_LANE}")
    a("v_lshl_add_u32 v10, v11, 4, v10")
    a("s_lshl_b32 s58, s55, 7")
    a("s_lshl_b32 s59, s57, 6")
    a("s_add_u32 s58, s58, s59")
    a("s_add_u32 s58, s58, 896")
    a(f"v_permlane32_swap_b32 v{P}, v{P+2}")
    a(f"v_permlane32_swap_b32 v{P+1}, v{P+3}")
    a(f"v_permlane32_swap_b32 v{P+4}, v{P+6}")
    a(f"v_permlane32_swap_b32 v{P+5}, v{P+7}")
    a("s_nop 1")
    a(f"buffer_store_dwordx4 v[{P}:{P+3}], v10, {srd(S_OUT)}, s58 offen")
    a(f"buffer_store_dwordx4 v[{P+4}:{P+7}], v10, {srd(S_OUT)}, s58 offen offset:32")
    a(f"s_branch {Lend}")
    a.label(Lpost)
    a(f"s_sub_u32 s56, s{S_WAVE}, 4")
    a("s_lshl_b32 s57, s55, 5")
    a(f"v_and_b32 v2, 31, v{V_LANE}")
    a("v_add_u32 v2, s57, v2")
    a("v_lshlrev_b32 v2, 4, v2")
    a(f"v_add_u32 v2, {FL_C}, v2")
    a(f"v_lshrrev_b32 v10, 3, v{V_LANE}")
    a("s_lshl_b32 s58, s54, 6")
    a("s_lshl_b32 s59, s56, 4")
    a("s_add_u32 s58, s58, s59")
    a("v_add_u32 v10, s58, v10")
    a(f"v_and_b32 v11, 7, v{V_LANE}")
    a("v_lshlrev_b32 v11, 4, v11")
    a("s_lshl_b32 s58, s55, 7")
    a("v_add_u32 v11, s58, v11")
    a("v_mul_u32_u24 v12, 896, v10")
    a("v_add_u32 v12, v12, v11")
    a(f"buffer_load_dwordx4 v[16:19], v12, {srd(S_AQ)}, 0 offen{NT}")
    a(f"v_add_u32 v12, {8*896}, v12")
    a(f"buffer_load_dwordx4 v[20:23], v12, {srd(S_AQ)}, 0 offen{NT}")
    a("v_mul_u32_u24 v13, 1792, v10")
    a("v_add_u32 v13, v13, v11")
    poll(a, 2)
    a(f"v_lshrrev_b32 v4, 1, v{V_LANE}")
    a(f"v_and_b32 v3, 1, v{V_LANE}")
    a("v_lshlrev_b32 v3, 4, v3")
    a("v_lshl_add_u32 v6, v4, 12, v3")
    a("s_lshl_b32 s57, s55, 18")
    a("s_lshl_b32 s58, s54, 7")
    a("s_add_u32 s57, s57, s58")
    a("s_lshl_b32 s58, s56, 5")
    a("s_add_u32 s57, s57, s58")
    a(f"s_add_u32 s57, s57, {WS_Z}")
    a("s_lshl_b32 s58, s56, 11")
    a(f"s_add_u32 m0, s58, {L3_Z}")
    a("s_nop 0")
    a(f"buffer_load_dwordx4 v6, {srd(S_WS)}, s57 offen{SC1} lds")
    a(f"s_add_u32 m0, s58, {L3_Z + 1024}")
    a(f"s_add_u32 s57, s57, {32*4096}")
    a(f"buffer_load_dwordx4 v6, {srd(S_WS)}, s57 offen{SC1} lds")
    a(f"v_lshrrev_b32 v14, 4, v{V_LANE}")
    a(f"v_bfe_u32 v15, v{V_LANE}, 2, 2")
    a("v_lshl_add_u32 v14, v14, 3, v15")
    a("v_lshlrev_b32 v14, 5, v14")
    a(f"v_and_b32 v24, 3, v{V_LANE}")
    a("v_lshl_add_u32 v14, v24, 3, v14")
    a(f"s_add_u32 s58, s58, {L3_Z}")
    a("v_add_u32 v14, s58, v14")
    a(f"v_and_b32 v24, 15, v{V_LANE}")
    a(f"v_lshrrev_b32 v25, 4, v{V_LANE}")
    a("v_and_b32 v26, 7, v24")
    a("v_xor_b32 v25, v25, v26")
    a("v_xor_b32 v26, 4, v25")
    a("s_lshl_b32 s58, s56, 11")
    a(f"s_add_u32 s58, s58, {L3_B}")
    a("v_lshlrev_b32 v24, 7, v24")
    a("v_add_u32 v24, s58, v24")
    a("v_lshl_add_u32 v25, v25, 4, v24")
    a("v_lshl_add_u32 v26, v26, 4, v24")
    a(f"v_lshrrev_b32 v27, 3, v{V_LANE}")
    a(f"v_and_b32 v28, 7, v{V_LANE}")
    a("v_xor_b32 v28, v28, v27")
    a("v_lshlrev_b32 v28, 4, v28")
    a("v_lshl_add_u32 v28, v27, 7, v28")
    a("v_add_u32 v28, s58, v28")
    a("s_waitcnt vmcnt(0)")
    for u in range(2):
        for jj in range(2):
            a(f"ds_read_b64_tr_b16 v[{32+4*u+2*jj}:{33+4*u+2*jj}], v14 offset:{(32*u + 4*jj)*32}")
    a("s_waitcnt lgkmcnt(0)")
    a("ds_write_b128 v25, v[32:35]")
    a("ds_write_b128 v26, v[36:39]")
    a("s_waitcnt lgkmcnt(0)")
    a("ds_read_b128 v[40:43], v28")
    a("ds_read_b128 v[44:47], v28 offset:1024")
    a("s_waitcnt lgkmcnt(0)")
    for n in range(2):
        Z, Q = 40 + 4*n, 16 + 4*n
        for r in range(4):
            a(f"v_lshlrev_b32 v48, 16, v{Z+r}")
            a(f"v_and_b32 v49, 0xffff0000, v{Z+r}")
            a(f"v_lshlrev_b32 v50, 16, v{Q+r}")
            a(f"v_and_b32 v51, 0xffff0000, v{Q+r}")
            a("v_mul_f32 v48, v48, v50")
            a("v_mul_f32 v49, v49, v51")
            a(f"v_cvt_pk_bf16_f32 v{52+4*n+r}, v48, v49")
    a(f"buffer_store_dwordx4 v[52:55], v13, {srd(S_OUT)}, 0 offen")
    a(f"v_add_u32 v13, {8*1792}, v13")
    a(f"buffer_store_dwordx4 v[56:59], v13, {srd(S_OUT)}, 0 offen")
    a("s_barrier")
    a.label(Lend)

def finale(a):
    L = lab("fin")
    a("s_cmp_lg_u32 s2, 255")
    a(f"s_cbranch_scc1 {L}")
    a(f"s_cmp_lg_u32 s{S_WAVE}, 0")
    a(f"s_cbranch_scc1 {L}")
    for q in range(4):
        a(f"v_lshlrev_b32 v2, 4, v{V_LANE}")
        a(f"v_add_u32 v2, {FL_B + q*1024}, v2")
        poll(a, 2)
    a(f"s_add_u32 s94, s{S_NRAW}, 1")
    a("v_mov_b32 v250, s94")
    a(f"v_mov_b32 v251, {FL_N}")
    a("s_mov_b64 exec, 1")
    a(f"buffer_store_dword v250, v251, {srd(S_WS)}, 0 offen sc1")
    a("s_mov_b64 exec, -1")
    a.label(L)

def kernel_text(name):
    a = Asm()
    G.uid = 0
    ex = "L_exit"
    prologue(a, ex)
    stamp_begin(a)
    stamp(a, 0)
    Lh = (lab("cvh"), lab("cvhs")); Lg = (lab("cvg"), lab("cvgs"))
    phase1(a, Lh, Lg)
    conv_phase(a, Lh, Lg)
    attention(a)
    phase3(a)
    finale(a)
    if STAMP_ON:
        a("s_waitcnt vmcnt(0)")
        stamp_flush(a)
    a.label(ex)
    a("s_endpgm")
    a.label("L_code_end")
    return a.text()
```
